```python
import torch

def _softmax(x, axis=-1):
    return torch.softmax(x, dim=axis)
def _gelu(x):
    return torch.nn.functional.gelu(x, approximate="tanh")
def _silu(x):
    return torch.nn.functional.silu(x)
def _sigmoid(x):
    return torch.sigmoid(x)
def _layernorm(x, axis=-1, eps=1e-5):
    m = x.mean(dim=axis, keepdim=True)
    v = x.var(dim=axis, keepdim=True, unbiased=False)
    return (x - m) / torch.sqrt(v + eps)
def _scatter_add(tgt, idx, src, axis=0):
    return tgt.clone().index_add_(axis, idx, src)
def _segment_sum(src, seg, n):
    out = torch.zeros((n,) + src.shape[1:], dtype=src.dtype)
    return out.index_add_(0, seg, src)
def _pad(x, pw):
    flat = tuple(v for pair in reversed(pw) for v in pair)
    return torch.nn.functional.pad(x, flat)

kernel_name = 'interleave_layers__sliding_local_dilated__glu_gated_swiglu__prompt'

def setup_inputs():

    _w = (lambda a: (lambda t: t.to(torch.bfloat16) if t.is_floating_point() else t)(torch.as_tensor(a)))
    def _A_setup():
        B, S, D = 1, 2048, 448
        return {
            "x": _w((lambda *s: torch.randn(*s, dtype=torch.bfloat16) * 0.05)(B, S, D)),
            "wqkv": _w((lambda *s: torch.randn(*s, dtype=torch.bfloat16) * 0.05)(D, 3 * D)),
            "wo": _w((lambda *s: torch.randn(*s, dtype=torch.bfloat16) * 0.05)(D, D)),
        }
    _A_in = _A_setup()

    def _B_setup():
        B, S, D, F = 1, 2048, 448, 1792
        return {
            "x": _w((lambda *s: torch.randn(*s, dtype=torch.bfloat16) * 0.05)(B, S, D)),
            "w1": _w((lambda *s: torch.randn(*s, dtype=torch.bfloat16) * 0.8)(D, F) * (2.0 / D) ** 0.5),
            "w3": _w((lambda *s: torch.randn(*s, dtype=torch.bfloat16) * 0.8)(D, F) * (2.0 / D) ** 0.5),
            "w2": _w((lambda *s: torch.randn(*s, dtype=torch.bfloat16) * 0.8)(F, D) * (2.0 / F) ** 0.5),
        }
    _B_in = _B_setup()

    return {
        "A_x": _A_in["x"],
        "A_wqkv": _A_in["wqkv"],
        "A_wo": _A_in["wo"],
        "B_x": _B_in["x"],
        "B_w1": _B_in["w1"],
        "B_w3": _B_in["w3"],
        "B_w2": _B_in["w2"],
    }

def reference(A_x, A_wqkv, A_wo, B_x, B_w1, B_w3, B_w2):
    def _A_ref(x, wqkv, wo):
        B, S, D = x.shape
        H = 16; Dh = D // H
        W, dil = 8, 2
        qkv = (lambda x, *d: x.permute(*d))((x @ wqkv).reshape(B, S, 3, H, Dh), 2, 0, 3, 1, 4)
        q, k, v = qkv[0], qkv[1], qkv[2]
        scale = Dh ** -0.5
        pos = torch.arange(S)
        off = torch.arange(W) * dil
        idx = pos[:, None] - off[None, :]
        mask = idx >= 0
        idx_c = torch.where(mask, idx, 0).reshape(-1)
        kg = k[:, :, idx_c, :].reshape(B, H, S, W, Dh)
        vg = v[:, :, idx_c, :].reshape(B, H, S, W, Dh)
        logits = torch.einsum("bhsd,bhswd->bhsw", q, kg) * scale
        logits = torch.where(mask[None, None, :, :], logits, -1e9)
        attn = _softmax(logits, axis=-1)
        o = torch.einsum("bhsw,bhswd->bhsd", attn, vg)
        return (lambda x, *d: x.permute(*d))(o, 0, 2, 1, 3).reshape(B, S, D) @ wo

    def _B_ref(x, w1, w3, w2):
        gate = torch.einsum("bsd,df->bsf", x, w1)
        up = torch.einsum("bsd,df->bsf", x, w3)
        h = _silu(gate) * up
        out = torch.einsum("bsf,fd->bsd", h, w2)
        return out

    x = A_x
    x = x + _A_ref(_layernorm(x, axis=-1), A_wqkv, A_wo)
    x = x + _B_ref(_layernorm(x, axis=-1), B_w1, B_w3, B_w2)
    x = x + _A_ref(_layernorm(x, axis=-1), A_wqkv, A_wo)
    x = x + _B_ref(_layernorm(x, axis=-1), B_w1, B_w3, B_w2)
    return x
```

```python
NAME = "interleave_layers__sliding_local_dilated__glu_gated_swiglu__prompt"

class Asm:
    def __init__(self):
        self.lines = []
        self.uid = 0
    def __call__(self, s=""):
        for l in s.split("\n"):
            self.lines.append(l)
    def label(self, base):
        self.uid += 1
        return "L_%s_%d" % (base, self.uid)
    def text(self):
        return "\n".join(self.lines) + "\n"

def file_header(launches):
    s = []
    for (k, g, b, lds) in launches:
        s.append("; @launch kernel=%s grid=(%d,1,1) block=(%d,1,1) lds=%d" % (k, g, b, lds))
    s.append('.amdgcn_target "amdgcn-amd-amdhsa--gfx950"')
    s.append(".text")
    return "\n".join(s) + "\n"

def kernel_begin(name):
    return ".globl %s\n.p2align 8\n.type %s,@function\n%s:\n" % (name, name, name)

def descriptor(name, vgpr, sgpr, accum):
    return """.amdhsa_kernel %s
  .amdhsa_next_free_vgpr %d
  .amdhsa_next_free_sgpr %d
  .amdhsa_accum_offset %d
  .amdhsa_group_segment_fixed_size 0
  .amdhsa_kernarg_size 80
  .amdhsa_user_sgpr_count 2
  .amdhsa_user_sgpr_kernarg_segment_ptr 1
  .amdhsa_system_sgpr_workgroup_id_x 1
.end_amdhsa_kernel
""" % (name, vgpr, sgpr, accum)
```

```python
from asmlib import *
import layout as L

N_W13, N_QKV, N_WO, N_W2, N_X0 = 112, 48, 28, 56, 32
PREP_WGS = N_W13 + N_QKV + N_WO + N_W2 + N_X0

def srd(a, d, lo, hi, size):
    a("s_mov_b32 s%d, s%d" % (d, lo))
    a("s_and_b32 s%d, s%d, 0xffff" % (d+1, hi))
    a("s_mov_b32 s%d, %d" % (d+2, size))
    a("s_mov_b32 s%d, 0x20000" % (d+3))

def gather(a, nfr, soff_fn, vaddr_fn, base=32):
    for i in range(nfr):
        for e in range(8):
            a("s_add_u32 s17, s16, %d" % soff_fn(i, e))
            a("buffer_load_ushort v%d, %s, s[8:11], s17 offen" % (base+8*i+e, vaddr_fn(i, e)))

def pack(a, i, nfr, dst, base=32):
    a("s_waitcnt vmcnt(%d)" % (8*(nfr-1-i) + i))
    for p in range(4):
        a("v_lshl_or_b32 v%d, v%d, 16, v%d" % (dst+p, base+8*i+2*p+1, base+8*i+2*p))

def red16_32(a, v, t):
    a("v_mov_b32 v%d, v%d" % (t, v)); a("s_nop 1")
    a("v_permlane16_swap_b32 v%d, v%d" % (v, t)); a("v_add_f32 v%d, v%d, v%d" % (v, v, t))
    a("v_mov_b32 v%d, v%d" % (t, v)); a("s_nop 1")
    a("v_permlane32_swap_b32 v%d, v%d" % (v, t)); a("v_add_f32 v%d, v%d, v%d" % (v, v, t))

def colsum_acc(a, src, first):
    for p in range(4):
        if first and p == 0:
            a("v_dot2_f32_bf16 v10, v%d, v11, 0" % (src+p))
        else:
            a("v_dot2_f32_bf16 v10, v%d, v11, v10" % (src+p))

def emit_prep(name="prep_kernel"):
    a = Asm()
    a(kernel_begin(name))
    a("s_cmp_ge_u32 s2, %d" % PREP_WGS); a("s_cbranch_scc1 PREP_END")
    a("s_load_dwordx4 s[20:23], s[0:1], 0")
    a("s_load_dwordx2 s[24:25], s[0:1], 16")
    a("s_load_dwordx4 s[28:31], s[0:1], 32")
    a("s_load_dwordx2 s[32:33], s[0:1], 48")
    a("s_load_dwordx2 s[34:35], s[0:1], 72")
    a("v_lshrrev_b32 v2, 6, v0"); a("v_and_b32 v0, 63, v0")
    a("v_readfirstlane_b32 s14, v2")
    a("v_lshlrev_b32 v1, 4, v0")
    a("v_mov_b32 v11, 0x3f803f80")
    a("v_bfrev_b32 v12, 1")
    a("s_waitcnt lgkmcnt(0)")
    srd(a, 4, 34, 35, L.END)
    a("s_cmp_lt_u32 s2, %d" % N_W13); a("s_cbranch_scc1 PREP_W13")
    a("s_cmp_lt_u32 s2, %d" % (N_W13+N_QKV)); a("s_cbranch_scc1 PREP_QKV")
    a("s_cmp_lt_u32 s2, %d" % (N_W13+N_QKV+N_WO)); a("s_cbranch_scc1 PREP_WO")
    a("s_cmp_lt_u32 s2, %d" % (N_W13+N_QKV+N_WO+N_W2)); a("s_cbranch_scc1 PREP_W2")
    a("s_branch PREP_X0")

    a("PREP_W13:")
    a("s_cmp_lt_u32 s14, 2")
    a("s_cselect_b32 s36, s28, s30"); a("s_cselect_b32 s37, s29, s31")
    srd(a, 8, 36, 37, 448*3584)
    a("v_and_b32 v2, 15, v0"); a("v_bfe_u32 v3, v0, 4, 1"); a("v_lshrrev_b32 v4, 5, v0")
    a("v_lshlrev_b32 v5, 4, v4"); a("v_lshl_add_u32 v5, v3, 2, v5"); a("v_mul_u32_u24 v5, 3584, v5")
    a("v_lshl_add_u32 v5, v2, 1, v5")
    a("s_and_b32 s15, s14, 1")
    a("s_mul_i32 s16, s15, %d" % (14*16*3584)); a("s_lshl_b32 s18, s2, 5"); a("s_add_u32 s16, s16, s18")
    gather(a, 7, lambda i, e: (32*i + 8*(e >> 2) + (e & 3))*3584, lambda i, e: "v5")
    a("s_lshr_b32 s19, s14, 1")
    a("v_lshlrev_b32 v6, 10, v4"); a("v_lshl_add_u32 v6, v3, 9, v6"); a("v_lshl_add_u32 v6, v2, 4, v6")
    a("s_lshl_b32 s18, s19, 8"); a("v_add_u32 v6, s18, v6")
    a("s_mul_i32 s18, s2, 28"); a("s_mul_i32 s17, s15, 14"); a("s_add_u32 s18, s18, s17"); a("s_lshl_b32 s18, s18, 10")
    a("s_add_u32 s18, s18, %d" % L.W13)
    for i in range(7):
        pack(a, i, 7, 16+4*(i & 1))
        colsum_acc(a, 16+4*(i & 1), i == 0)
        a("buffer_store_dwordx4 v[%d:%d], v6, s[4:7], s18 offen" % (16+4*(i & 1), 19+4*(i & 1)))
        a("s_add_u32 s18, s18, 2048")
    a("s_nop 2")
    red16_32(a, 10, 13)
    a("s_lshl_b32 s18, s2, 8"); a("s_lshl_b32 s17, s15, 7"); a("s_add_u32 s18, s18, s17")
    a("s_lshl_b32 s17, s19, 6"); a("s_add_u32 s18, s18, s17"); a("s_add_u32 s18, s18, %d" % L.C13)
    a("v_lshlrev_b32 v7, 2, v2")
    a("buffer_store_dword v10, v7, s[4:7], s18 offen")
    a("s_branch PREP_END")

    a("PREP_QKV:")
    srd(a, 8, 22, 23, 448*2688)
    a("s_sub_u32 s15, s2, %d" % N_W13); a("s_lshl_b32 s15, s15, 2"); a("s_add_u32 s15, s15, s14")
    a("s_mul_i32 s38, s15, 43691"); a("s_lshr_b32 s38, s38, 19")
    a("s_mul_i32 s17, s38, 12"); a("s_sub_u32 s39, s15, s17")
    a("s_and_b32 s40, s39, 1"); a("s_lshr_b32 s39, s39, 1")
    a("s_and_b32 s41, s39, 1"); a("s_lshr_b32 s42, s39, 1")
    a("v_and_b32 v2, 15, v0"); a("v_bfe_u32 v3, v0, 4, 1"); a("v_lshrrev_b32 v4, 5, v0")
    a("v_lshlrev_b32 v5, 4, v4"); a("v_lshl_add_u32 v5, v3, 2, v5"); a("v_mul_u32_u24 v5, 2688, v5")
    a("v_lshl_add_u32 v5, v2, 1, v5")
    a("s_lshl_b32 s17, s41, 4"); a("v_add_u32 v8, s17, v2")
    a("v_cmp_le_u32 vcc, 28, v8"); a("s_nop 1"); a("v_cndmask_b32 v5, v5, v12, vcc")
    a("s_mul_i32 s16, s40, %d" % (7*32*2688)); a("s_mul_i32 s17, s42, 896"); a("s_add_u32 s16, s16, s17")
    a("s_mul_i32 s17, s38, 56"); a("s_add_u32 s16, s16, s17"); a("s_lshl_b32 s17, s41, 5"); a("s_add_u32 s16, s16, s17")
    gather(a, 7, lambda i, e: (32*i + 8*(e >> 2) + (e & 3))*2688, lambda i, e: "v5")
    a("s_mul_i32 s18, s38, 14"); a("s_mul_i32 s17, s40, 7"); a("s_add_u32 s18, s18, s17"); a("s_mul_i32 s18, s18, 6")
    a("s_add_u32 s18, s18, s39"); a("s_lshl_b32 s18, s18, 10"); a("s_add_u32 s18, s18, %d" % L.WQKV)
    for i in range(7):
        pack(a, i, 7, 16+4*(i & 1))
        colsum_acc(a, 16+4*(i & 1), i == 0)
        a("buffer_store_dwordx4 v[%d:%d], v1, s[4:7], s18 offen" % (16+4*(i & 1), 19+4*(i & 1)))
        a("s_add_u32 s18, s18, 6144")
    a("s_nop 2")
    red16_32(a, 10, 13)
    a("s_lshl_b32 s18, s15, 6"); a("s_add_u32 s18, s18, %d" % L.CQKV)
    a("v_lshlrev_b32 v7, 2, v2")
    a("buffer_store_dword v10, v7, s[4:7], s18 offen")
    a("s_branch PREP_END")

    a("PREP_WO:")
    srd(a, 8, 24, 25, 448*896)
    a("s_sub_u32 s15, s2, %d" % (N_W13+N_QKV)); a("s_lshl_b32 s15, s15, 2"); a("s_add_u32 s15, s15, s14")
    a("s_lshr_b32 s38, s15, 4"); a("s_and_b32 s39, s15, 15")
    a("v_and_b32 v2, 31, v0"); a("v_lshrrev_b32 v3, 5, v0")
    a("v_mul_u32_u24 v5, %d, v3" % (4*896)); a("v_lshl_add_u32 v5, v2, 1, v5")
    a("v_cmp_eq_u32 vcc, 1, v3"); a("s_nop 1"); a("v_cndmask_b32 v8, v5, v12, vcc")
    a("s_mul_i32 s16, s39, %d" % (28*896)); a("s_lshl_b32 s17, s38, 7"); a("s_add_u32 s16, s16, s17")
    gather(a, 4, lambda i, e: (16*(e >> 2) + 8*(i >> 1) + (e & 3))*896 + 64*(i & 1),
           lambda i, e: "v8" if ((i >> 1) == 1 and e >= 4) else "v5")
    a("s_lshl_b32 s18, s15, 12"); a("s_add_u32 s18, s18, %d" % L.WO)
    for i in range(4):
        pack(a, i, 4, 16+4*(i & 1))
        a("buffer_store_dwordx4 v[%d:%d], v1, s[4:7], s18 offen offset:%d" % (16+4*(i & 1), 19+4*(i & 1), 1024*i))
    a("s_branch PREP_END")

    a("PREP_W2:")
    srd(a, 8, 32, 33, 1792*896)
    a("s_sub_u32 s15, s2, %d" % (N_W13+N_QKV+N_WO)); a("s_lshl_b32 s15, s15, 2"); a("s_add_u32 s15, s15, s14")
    a("s_lshr_b32 s38, s15, 5"); a("s_bfe_u32 s39, s15, 0x10004"); a("s_and_b32 s40, s15, 15")
    a("v_and_b32 v2, 31, v0"); a("v_lshrrev_b32 v3, 5, v0")
    a("v_mul_u32_u24 v5, %d, v3" % (4*896)); a("v_lshl_add_u32 v5, v2, 1, v5")
    a("s_mul_i32 s16, s40, %d" % (7*16*896)); a("s_lshl_b32 s17, s38, 7"); a("s_add_u32 s16, s16, s17")
    a("s_lshl_b32 s17, s39, 6"); a("s_add_u32 s16, s16, s17")
    gather(a, 7, lambda i, e: (16*i + 8*(e >> 2) + (e & 3))*896, lambda i, e: "v5")
    a("s_mul_i32 s18, s38, 112"); a("s_mul_i32 s17, s40, 7"); a("s_add_u32 s18, s18, s17"); a("s_lshl_b32 s18, s18, 1")
    a("s_add_u32 s18, s18, s39"); a("s_lshl_b32 s18, s18, 10"); a("s_add_u32 s18, s18, %d" % L.W2)
    for i in range(7):
        pack(a, i, 7, 16+4*(i & 1))
        a("buffer_store_dwordx4 v[%d:%d], v1, s[4:7], s18 offen" % (16+4*(i & 1), 19+4*(i & 1)))
        a("s_add_u32 s18, s18, 2048")
    a("s_branch PREP_END")

    a("PREP_X0:")
    srd(a, 8, 20, 21, 2048*896)
    a("s_sub_u32 s15, s2, %d" % (N_W13+N_QKV+N_WO+N_W2)); a("s_lshl_b32 s15, s15, 2"); a("s_add_u32 s15, s15, s14")
    a("v_and_b32 v2, 15, v0"); a("v_bfe_u32 v3, v0, 4, 1"); a("v_lshrrev_b32 v4, 5, v0")
    a("s_and_b32 s16, s15, 63"); a("s_lshl_b32 s16, s16, 5"); a("s_lshr_b32 s17, s15, 6"); a("s_add_u32 s16, s16, s17")
    a("s_mul_i32 s16, s16, 896")
    a("v_mul_u32_u24 v5, 1792, v2"); a("v_lshl_add_u32 v5, v4, 5, v5"); a("v_lshl_add_u32 v5, v3, 3, v5")
    for s in range(14):
        a("buffer_load_dwordx2 v[%d:%d], v5, s[8:11], s16 offen offset:%d" % (32+4*s, 33+4*s, 64*s))
        a("buffer_load_dwordx2 v[%d:%d], v5, s[8:11], s16 offen offset:%d" % (34+4*s, 35+4*s, 64*s+16))
    a("s_mul_i32 s18, s15, %d" % (14*1024)); a("s_add_u32 s18, s18, %d" % L.X0)
    a("v_mov_b32 v10, 0"); a("v_mov_b32 v9, 0")
    for s in range(14):
        a("s_waitcnt vmcnt(%d)" % (2*(13-s) + s))
        a("buffer_store_dwordx4 v[%d:%d], v1, s[4:7], s18 offen" % (32+4*s, 35+4*s))
        a("s_add_u32 s18, s18, 1024")
        for p in range(4):
            a("v_dot2_f32_bf16 v10, v%d, v11, v10" % (32+4*s+p))
            a("v_dot2_f32_bf16 v9, v%d, v%d, v9" % (32+4*s+p, 32+4*s+p))
    a("s_nop 2")
    red16_32(a, 10, 13); red16_32(a, 9, 13)
    a("v_cmp_eq_u32 vcc, 1, v3"); a("s_nop 1"); a("v_cndmask_b32 v16, v10, v9, vcc")
    a("v_cmp_eq_u32 vcc, 1, v4"); a("s_nop 1"); a("v_cndmask_b32 v16, v16, 0, vcc")
    for r in range(17, 23): a("v_mov_b32 v%d, 0" % r)
    a("v_lshlrev_b32 v6, 11, v3"); a("v_lshl_add_u32 v6, v2, 6, v6"); a("v_mul_u32_u24 v7, 28, v4"); a("v_add_u32 v6, v6, v7")
    a("s_lshr_b32 s18, s15, 1"); a("s_lshl_b32 s18, s18, 12"); a("s_and_b32 s17, s15, 1"); a("s_lshl_b32 s17, s17, 10")
    a("s_add_u32 s18, s18, s17"); a("s_add_u32 s18, s18, %d" % L.ST0)
    a("buffer_store_dwordx4 v[16:19], v6, s[4:7], s18 offen")
    a("buffer_store_dwordx3 v[20:22], v6, s[4:7], s18 offen offset:16")
    a("PREP_END:")
    a("s_endpgm")
    return a.text(), descriptor(name, 96, 48, 96)

if __name__ == "__main__":
    t, d = emit_prep()
    open("prep_only.s", "w").write(file_header([("prep_kernel", PREP_WGS, 256, 0)]) + t + '.section .rodata,"a"\n.p2align 6\n' + d)
```

```python
KB = 1024
def al(x, a=4096): return (x + a - 1) // a * a
WQKV = 0
WO   = al(WQKV + 16*84*KB)
W13  = al(WO + 7*64*KB)
W2   = al(W13 + 112*28*KB)
CQKV = al(W2 + 7*224*KB)
C13  = al(CQKV + 16*6*2*64)
X0   = al(C13 + 112*256)
X2   = al(X0 + 128*14*KB)
O    = al(X2 + 128*14*KB)
X1   = al(O + 64*32*KB)
H    = al(X1 + 64*28*KB)
ST0  = al(H + 64*112*KB)
ST1  = al(ST0 + 64*4*KB)
ST2  = al(ST1 + 64*4*KB)
XH   = al(ST2 + 64*4*KB)
STH  = al(XH + 8*14*KB)
FLG  = al(STH + 8*4*KB)
TS   = al(FLG + 16*KB)
END  = al(TS + 256*KB)
if __name__ == "__main__":
    for k,v in list(globals().items()):
        if k.isupper(): print(k, hex(v), v)
```

```python
import re, sys

TRANS = ("v_exp_f32","v_log_f32","v_rcp_f32","v_rsq_f32","v_sqrt_f32","v_sin_f32","v_cos_f32")

def regs(tok):
    tok = tok.strip()
    tok = tok.lstrip("-")
    m = re.match(r"^abs\((.*)\)$", tok)
    if m: tok = m.group(1)
    tok = tok.strip("|")
    m = re.match(r"^([vas])\[(\d+):(\d+)\]$", tok)
    if m: return {(m.group(1), i) for i in range(int(m.group(2)), int(m.group(3))+1)}
    m = re.match(r"^([vas])(\d+)$", tok)
    if m: return {(m.group(1), int(m.group(2)))}
    if tok in ("vcc","vcc_lo","vcc_hi"): return {("x","vcc")}
    if tok in ("exec","exec_lo","exec_hi"): return {("x","exec")}
    if tok == "m0": return {("x","m0")}
    return set()

class I: pass

def parse(line):
    line = line.split(";")[0].split("//")[0].strip()
    if not line or line.endswith(":") or line.startswith("."): return None
    parts = line.split(None, 1)
    op = parts[0]
    for suf in ("_e32","_e64","_dpp","_sdwa"):
        if op.endswith(suf): op = op[:-len(suf)]
    rest = parts[1] if len(parts) > 1 else ""
    ops=[]; cur=""; depth=0
    for ch in rest:
        if ch in "[(": depth+=1
        if ch in "])": depth-=1
        if ch=="," and depth==0: ops.append(cur.strip()); cur=""
        else: cur+=ch
    if cur.strip(): ops.append(cur.strip())
    mods=""
    if ops:
        sp = ops[-1].split()
        ops[-1]=sp[0]; mods=" ".join(sp[1:])
    i=I(); i.op=op; i.ops=ops; i.mods=mods; i.text=line
    i.dpp = ("row_" in mods or "quad_perm" in mods or "wave_" in mods)
    i.defs=set(); i.uses=set(); i.kind="other"
    R=[regs(o) for o in ops]
    if op.startswith("v_mfma"):
        i.kind="mfma"; i.defs=R[0]; i.A=R[1]; i.B=R[2]; i.C=R[3]; i.uses=R[1]|R[2]|R[3]
        i.passes = 8 if "32x32x16" in op else 4 if "16x16x32" in op else 16
    elif op.startswith("buffer_load") or op.startswith("global_load"):
        i.kind="vmem"; i.load=True
        if " lds" in (" "+mods) or "_lds_" in op:
            i.lds=True; i.uses=set().union(*R)|{("x","m0")}
        else:
            i.lds=False; i.defs=R[0]; i.uses=set().union(*R[1:])
    elif op.startswith("buffer_store") or op.startswith("global_store") or op.startswith("buffer_atomic") or op.startswith("global_atomic"):
        i.kind="vmem"; i.load=False; i.uses=set().union(*R)
        i.wide = op.endswith("x3") or op.endswith("x4")
        i.data = R[0] if op.startswith("buffer") else R[1]
        if "atomic" in op and "sc0" in mods: i.defs=R[0]; i.load=True; i.lds=False
    elif op in ("buffer_wbl2","buffer_inv"):
        i.kind="vmem"; i.load=False; i.wide=False; i.data=set()
    elif op.startswith("ds_read") or op.startswith("ds_bpermute") or op.startswith("ds_permute") or op.startswith("ds_swizzle"):
        i.kind="ds"; i.defs=R[0]; i.uses=set().union(*R[1:])
    elif op.startswith("ds_"):
        i.kind="ds"; i.uses=set().union(*R)
    elif op.startswith("s_load") or op.startswith("s_buffer_load") or op in("s_memtime","s_memrealtime"):
        i.kind="smem"; i.defs=R[0]; i.uses=set().union(*R[1:]) if len(R)>1 else set()
    elif op.startswith("v_"):
        i.kind="valu"
        if op.startswith("v_permlane") and "swap" in op:
            i.defs=R[0]|R[1]; i.uses=R[0]|R[1]
        elif op.startswith("v_cmpx"):
            i.defs=R[0]|{("x","exec")}; i.uses=set().union(*R[1:])
        elif op.startswith("v_cmp"):
            i.defs=R[0]; i.uses=set().union(*R[1:])
        elif op in("v_add_co_u32","v_sub_co_u32","v_addc_co_u32","v_subb_co_u32"):
            i.defs=R[0]|R[1]; i.uses=set().union(*R[2:])
        else:
            i.defs=R[0]; i.uses=set().union(*R[1:]) if len(R)>1 else set()
            if op.startswith("v_fmac") or op.startswith("v_dot2c") or op.startswith("v_pk_fmac") or op.startswith("v_writelane") or i.dpp: i.uses|=R[0]
            if op=="v_cndmask_b32" and len(ops)==3: i.uses|={("x","vcc")}
    elif op.startswith("s_"):
        i.kind="salu"
        if op in("s_waitcnt","s_nop","s_barrier","s_endpgm","s_sleep","s_setprio","s_branch") or op.startswith("s_cbranch") or op.startswith("s_cmp"):
            i.uses=set().union(*R) if R else set()
        else:
            i.defs=R[0] if R else set(); i.uses=set().union(*R[1:]) if len(R)>1 else set()
            if "saveexec" in op: i.defs|={("x","exec")}
    return i

def ws(i):
    if i.op=="s_nop": return int(i.ops[0],0)+1
    return 1


def deficit(ins, k, c, errs=None):
    worst=0
    d=0
    for j in range(k-1, max(-1,k-1-24), -1):
        p=ins[j]
        if p.op in("s_endpgm","s_branch"): break
        need=0; why=""
        def req(n,w):
            nonlocal need,why
            if n>need: need=n; why=w
        vd={r for r in p.defs if r[0] in "va"}
        sd={r for r in p.defs if r[0]=="s" or r==("x","vcc")}
        if p.kind=="valu":
            if c.kind=="mfma" and vd&c.uses: req(2,"valu->mfma")
            if c.kind=="valu" and c.op.startswith("v_permlane") and vd&c.uses: req(2,"valu->permlane")
            if c.kind=="valu" and c.dpp and vd&c.uses: req(2,"valu->dpp")
            if c.op in("v_readfirstlane_b32","v_readlane_b32") and vd&c.uses: req(1,"valu->readlane")
            if p.op in TRANS and c.kind in("valu",) and vd&c.uses: req(1,"trans->valu")
            if p.op.startswith("v_dot2") and c.kind in("valu","vmem","ds","mfma") and vd&(c.uses|c.defs) and not (c.op==p.op): req(3,"dot->other")
            if c.kind=="vmem" and {r for r in sd if r[0]=="s"}&c.uses: req(5,"valu sgpr->vmem")
            if c.kind=="valu" and sd&c.uses: req(2,"valu sgpr->valu")
            if ("x","exec") in p.defs and c.kind=="mfma": req(4,"exec->mfma")
            if ("x","exec") in p.defs and (c.op.startswith("v_read") or c.op.startswith("v_permlane") or c.op.startswith("v_writelane")): req(4,"exec->lane op")
            if ("x","exec") in p.defs and c.kind=="valu" and c.dpp: req(5,"exec->dpp")
            if c.kind=="salu" and {r for r in sd}&c.uses: req(1,"valu sgpr->salu (pad)")
            if c.op in("s_cbranch_vccz","s_cbranch_vccnz") and ("x","vcc") in p.defs: req(5,"vcc->vccz branch (pad)")
        if p.kind=="mfma":
            big = {4:8,8:12,16:20}[p.passes]; ov={4:6,8:10,16:18}[p.passes]; war={4:3,8:7,16:15}[p.passes]
            if c.kind=="mfma":
                if p.defs&(c.A|c.B): req(big,"mfma D->mfma A/B")
                if p.defs&c.C and not (p.defs==c.C and p.passes==c.passes): req(ov,"mfma D->mfma C overlap")
                if p.defs&c.defs and not (p.defs==c.C and p.passes==c.passes): req(ov,"mfma D WAW (conservative)")
            elif c.kind in("valu","vmem","ds"):
                if p.defs&(c.uses|c.defs): req(big,"mfma D->%s"%c.kind)
                if c.kind=="valu" and p.C&c.defs: req(war,"mfma C WAR")
                if c.kind in("vmem","ds") and p.C&c.defs: req(war,"mfma C WAR(load)")
        if p.kind=="salu" and ("x","m0") in p.defs and c.kind=="vmem" and getattr(c,"lds",False): req(1,"m0->lds dma")
        if p.kind=="vmem" and not p.load and getattr(p,"wide",False) and c.kind in("valu","mfma") and p.data&c.defs: req(2,"wide store WAR")
        if p.kind=="vmem" and not p.load and getattr(p,"wide",False) and c.kind in("ds","vmem") and p.data&c.defs: req(1,"wide store WAR")
        if need>d:
            worst=max(worst,need-d)
            if errs is not None:
                errs.append("line %d: %s needs %d wait states after line %d (%s), has %d\n    %s\n    %s"%(c.line,why,need,p.line,p.op,d,p.text,c.text))
        d+=ws(p)
        if d>=20: break
    return worst

def fix(text):
    out=[]; ins=[]; n_ins=0
    for l in text.split("\n"):
        i=parse(l)
        if i is not None:
            i.line=0
            d=deficit(ins,len(ins),i)
            while d>0:
                k=min(d,16)
                nl="s_nop %d"%(k-1)
                out.append(nl); p=parse(nl); p.line=0; ins.append(p); d-=k; n_ins+=1
            ins.append(i)
        out.append(l)
    return "\n".join(out), n_ins

def lint(text, verbose=True):
    errs=[]
    ins=[]
    for n,l in enumerate(text.split("\n"),1):
        i=parse(l)
        if i is None:
            continue
        i.line=n; ins.append(i)
    vm=[]; lg=[]
    for k,c in enumerate(ins):
        if c.op in("s_endpgm","s_branch"): vm=[]; lg=[]
        deficit(ins,k,c,errs)
        touched=c.uses|c.defs
        for p in vm:
            if p.load and not p.lds and p.defs&touched:
                errs.append("line %d: touches pending vmem dest of line %d\n    %s\n    %s"%(c.line,p.line,p.text,c.text))
        for p in lg:
            if p.defs&touched:
                errs.append("line %d: touches pending lgkm dest of line %d\n    %s\n    %s"%(c.line,p.line,p.text,c.text))
        if c.kind=="vmem":
            vm.append(c)
            if len(vm)>63: errs.append("line %d: more than 63 vmem outstanding (%d)"%(c.line,len(vm)))
        if c.kind in("ds","smem"): lg.append(c)
        if c.op=="s_waitcnt":
            t=" ".join(c.ops)+" "+c.mods
            m=re.search(r"vmcnt\((\d+)\)",t)
            if m:
                n=int(m.group(1)); vm = vm[len(vm)-n:] if n>0 and n<len(vm) else ([] if n==0 else vm)
            m=re.search(r"lgkmcnt\((\d+)\)",t)
            if m:
                n=int(m.group(1))
                if n>15: errs.append("line %d lgkmcnt>15"%c.line)
                if n==0: lg=[]
                elif any(p.kind=="smem" for p in lg): pass
                elif n<len(lg): lg=lg[len(lg)-n:]
    return errs


def autowait(text):
    out=[]; vm=[]; lg=[]
    def emit_wait(nv=None, nl=None):
        nonlocal vm, lg
        parts=[]
        if nv is not None:
            parts.append("vmcnt(%d)"%nv); vm = vm[len(vm)-nv:] if nv>0 else []
        if nl is not None:
            parts.append("lgkmcnt(%d)"%nl); lg = lg[len(lg)-nl:] if nl>0 else []
        out.append("s_waitcnt "+" ".join(parts))
    for l in text.split("\n"):
        st=l.strip()
        m=re.match(r"^;\s*@waitvm\s+(\S+)",st)
        if m:
            tag=m.group(1)
            idx=[k for k,p in enumerate(vm) if p.tag==tag]
            if idx: emit_wait(nv=len(vm)-1-max(idx))
            continue
        m=re.match(r"^;\s*@waitlg\s+(\S+)",st)
        if m:
            tag=m.group(1)
            idx=[k for k,p in enumerate(lg) if p.tag==tag]
            if idx: emit_wait(nl=min(15,len(lg)-1-max(idx)))
            continue
        c=parse(l)
        if c is None:
            out.append(l); continue
        m=re.search(r";\s*@tag\s+(\S+)",l); c.tag=m.group(1) if m else None
        c.alt = "@alt" in l
        if c.op in("s_endpgm","s_branch"): vm=[]; lg=[]
        touched=c.uses|c.defs
        nv=nl=None
        idx=[k for k,p in enumerate(vm) if p.load and not p.lds and p.defs&touched]
        if idx: nv=len(vm)-1-max(idx)
        idx=[k for k,p in enumerate(lg) if p.defs&touched]
        if idx:
            nl=len(lg)-1-max(idx)
            if any(p.kind=="smem" for p in lg): nl=0
            nl=min(nl,15)
        if c.kind=="vmem" and len(vm)>=63:
            nv=min(nv if nv is not None else 62, 62)
        if nv is not None or nl is not None: emit_wait(nv,nl)
        if c.kind=="vmem" and not c.alt: vm.append(c)
        if c.kind in("ds","smem"): lg.append(c)
        if c.op=="s_waitcnt":
            t=" ".join(c.ops)+" "+c.mods
            m=re.search(r"vmcnt\((\d+)\)",t)
            if m:
                n=int(m.group(1)); vm = vm[len(vm)-n:] if 0<n<len(vm) else ([] if n==0 else vm)
            m=re.search(r"lgkmcnt\((\d+)\)",t)
            if m:
                n=int(m.group(1))
                if n==0: lg=[]
                elif not any(p.kind=="smem" for p in lg) and n<len(lg): lg=lg[len(lg)-n:]
        out.append(l)
    return "\n".join(out)

def finish(text):
    t=autowait(text)
    t,n=fix(t)
    return t

if __name__=="__main__":
    e=lint(open(sys.argv[1]).read())
    for x in e[:60]: print(x)
    print("lint: %d problems"%len(e))
```

```python
from asmlib import *
import layout as L
import lint

LOG2E = 1.4426950408889634
def fhex(x):
    import struct
    return "0x%08x" % struct.unpack("<I", struct.pack("<f", x))[0]

def vr(b, n=4): return "v[%d:%d]" % (b, b+n-1)
def ar(b, n=4): return "a[%d:%d]" % (b, b+n-1)

S_SG, S_M, S_W = 12, 13, 14

LDS_WQKV = 0
LDS_RING = 86016
RING_FR = 76
LDS_STAT = LDS_RING + RING_FR*1024 - 2048
LDS_TOTAL = 163840

def srd(a, d, lo, hi, size):
    a("s_mov_b32 s%d, s%d" % (d, lo))
    a("s_and_b32 s%d, s%d, 0xffff" % (d+1, hi))
    a("s_mov_b32 s%d, %d" % (d+2, size))
    a("s_mov_b32 s%d, 0x20000" % (d+3))

def prologue(a, endlabel, maxm=32):
    a("s_cmp_ge_u32 s2, 256"); a("s_cbranch_scc1 %s" % endlabel)
    a("s_load_dwordx2 s[16:17], s[0:1], 72")
    a("s_load_dwordx2 s[18:19], s[0:1], 56")
    a("v_lshrrev_b32 v2, 6, v0"); a("v_and_b32 v0, 63, v0")
    a("v_readfirstlane_b32 s%d, v2" % S_W)
    a("v_lshlrev_b32 v1, 4, v0")
    a("s_and_b32 s%d, s2, 7" % S_SG); a("s_lshr_b32 s%d, s2, 3" % S_M)
    a("s_waitcnt lgkmcnt(0)")
    srd(a, 4, 16, 17, L.END); srd(a, 8, 18, 19, 2048*896)
    if maxm < 32:
        a("s_cmp_ge_u32 s%d, %d" % (S_M, maxm)); a("s_cbranch_scc1 %s" % endlabel)

def load_frags(a, dsts, sreg, fl="", tag=None, stride=1024, first=0):
    cur = None
    for i, d in enumerate(dsts):
        off = (first + i) * stride
        base = off // 4096 * 4096
        if base != cur:
            if base == 0: a("s_mov_b32 s31, s%d" % sreg)
            else: a("s_add_u32 s31, s%d, %d" % (sreg, base))
            cur = base
        a("buffer_load_dwordx4 %s, v1, s[4:7], s31 offen offset:%d%s%s" % (d, off - base, fl, (" ; @tag " + tag) if tag else ""))

def swap_red(a, op, v, t, which):
    a("v_mov_b32 v%d, v%d" % (t, v))
    a("v_permlane%d_swap_b32 v%d, v%d" % (which, v, t))
    a("%s v%d, v%d, v%d" % (op, v, v, t))

def mean_rstd(a, s1, s2, mean, rstd, t):
    a("v_mul_f32 v%d, %s, v%d" % (mean, fhex(1.0/448), s1))
    a("v_mul_f32 v%d, v%d, v%d" % (t, mean, mean))
    a("v_mov_b32 v%d, %s" % (rstd, fhex(1.0/448)))
    a("v_fma_f32 v%d, v%d, v%d, -v%d" % (t, s2, rstd, t))
    a("v_max_f32 v%d, 0, v%d" % (t, t))
    a("v_add_f32 v%d, %s, v%d" % (t, fhex(1e-5), t))
    a("v_rsq_f32 v%d, v%d" % (rstd, t))

P1_ACC = 16
P1_WF = 80
P1_C = 128
P1_CV = 5
P1_ST = 144
def p1_xf(s, b):
    i = s*3 + b
    return ar(176 + 4*i) if i < 20 else vr(168 + 4*(i-20))
def accQ(qb, j): return P1_ACC + 4*(qb*2 + j)
def accK(b, j): return P1_ACC + 16 + 4*(b*2 + j)
def accV(b, j): return P1_ACC + 40 + 4*(b*2 + j)

def p1_load_w(a):
    a("s_and_b32 s16, s%d, 15" % S_M); a("s_mul_i32 s16, s16, 86016"); a("s_mul_i32 s17, s%d, %d" % (S_W, 21*1024))
    a("s_add_u32 s16, s16, s17"); a("s_add_u32 s16, s16, %d" % L.WQKV)
    for i in range(21):
        if i % 4 == 0:
            a("s_add_u32 m0, s17, %d" % (LDS_WQKV + i*1024)); a("s_add_u32 s31, s16, %d" % (i*1024))
        a("buffer_load_dwordx4 v1, s[4:7], s31 offen offset:%d lds ; @tag wqkv" % ((i % 4)*1024))

def p1_load_c(a):
    a("s_and_b32 s16, s%d, 15" % S_M); a("s_mul_i32 s16, s16, 768"); a("s_add_u32 s16, s16, %d" % L.CQKV)
    a("v_lshrrev_b32 v2, 4, v0"); a("v_lshlrev_b32 v2, 4, v2")
    a("v_and_b32 v3, 15, v0"); a("v_lshlrev_b32 v3, 2, v3")
    for fr in range(4):
        for kh in range(2):
            a("buffer_load_dwordx4 %s, v2, s[4:7], s16 offen offset:%d" % (vr(16 + 8*fr + 4*kh), fr*128 + kh*64))
    for fr in range(4, 6):
        for kh in range(2):
            a("buffer_load_dword v%d, v3, s[4:7], s16 offen offset:%d" % (48 + 2*(fr-4) + kh, fr*128 + kh*64))
    for fr in range(4):
        for r in range(4):
            a("v_add_f32 v%d, v%d, v%d" % (P1_C + 4*fr + r, 16 + 8*fr + r, 20 + 8*fr + r))
    for j in range(2):
        a("v_add_f32 v%d, v%d, v%d" % (P1_CV + j, 48 + 2*j, 49 + 2*j))

def p1(a, layer, st="", ld=""):
    X = L.X0 if layer == 0 else L.X2
    ST = L.ST0 if layer == 0 else L.ST2
    a("; ======== P1 layer %d" % layer)
    a("s_lshl_b32 s20, s%d, 4" % S_SG); a("s_lshr_b32 s16, s%d, 4" % S_M); a("s_lshl_b32 s16, s16, 3"); a("s_add_u32 s20, s20, s16")
    a("s_lshl_b32 s16, s%d, 1" % S_W); a("s_add_u32 s20, s20, s16")
    a("s_and_b32 s16, s20, 63"); a("s_cmp_eq_u32 s16, 0"); a("s_cselect_b32 s21, 0, 1")
    a("s_sub_u32 s22, s20, s21")
    a("s_mul_i32 s23, s22, 14336"); a("s_add_u32 s23, s23, %d" % X)
    a("s_mul_i32 s24, s20, 14336"); a("s_add_u32 s24, s24, %d" % X)
    a("s_add_u32 s25, s24, 14336")
    a("s_lshr_b32 s26, s22, 1"); a("s_lshl_b32 s26, s26, 12"); a("s_and_b32 s16, s22, 1"); a("s_lshl_b32 s16, s16, 10")
    a("s_add_u32 s26, s26, s16"); a("s_add_u32 s26, s26, %d" % ST)
    a("s_lshl_b32 s27, s20, 11"); a("s_add_u32 s27, s27, %d" % ST)
    a("v_and_b32 v2, 15, v0"); a("v_bfe_u32 v3, v0, 4, 1"); a("v_lshrrev_b32 v4, 5, v0")
    a("v_lshlrev_b32 v16, 11, v3"); a("v_lshl_add_u32 v16, v2, 6, v16"); a("v_mul_u32_u24 v17, 28, v4"); a("v_add_u32 v16, v16, v17")
    for b in range(3):
        sreg, off = (26, 0) if b == 0 else (27, (b-1)*1024)
        a("buffer_load_dwordx4 %s, v16, s[4:7], s%d offen offset:%d%s" % (vr(P1_ST + 8*b), sreg, off, ld))
        a("buffer_load_dwordx3 %s, v16, s[4:7], s%d offen offset:%d%s" % (vr(P1_ST + 8*b + 4, 3), sreg, off + 16, ld))
    for s in range(14):
        if s % 4 == 0 and s:
            for r in (23, 24, 25): a("s_add_u32 s%d, s%d, 4096" % (r, r))
        for b in range(3):
            a("buffer_load_dwordx4 %s, v1, s[4:7], s%d offen offset:%d%s" % (p1_xf(s, b), 23 + b, (s % 4)*1024, ld))
    a("s_barrier")
    def wread(s):
        for fr in range(6):
            off = LDS_WQKV + (s*6 + fr)*1024
            base = "v1" if off < 65536 else "v7"
            a("ds_read_b128 %s, %s offset:%d" % (vr(P1_WF + 24*(s & 1) + 4*fr), base, off if off < 65536 else off - 65536))
    a("v_add_u32 v7, 0x10000, v1")
    wread(0)
    for s in range(14):
        if s + 1 < 14: wread(s + 1)
        W = lambda fr: vr(P1_WF + 24*(s & 1) + 4*fr)
        def C(r): return "0" if s == 0 else vr(r)
        for j in range(2):
            for b in range(3):
                a("v_mfma_f32_16x16x32_bf16 %s, %s, %s, %s" % (vr(accK(b, j)), W(2 + j), p1_xf(s, b), C(accK(b, j))))
        for j in range(2):
            for qb in range(2):
                a("v_mfma_f32_16x16x32_bf16 %s, %s, %s, %s" % (vr(accQ(qb, j)), W(j), p1_xf(s, qb + 1), C(accQ(qb, j))))
        for j in range(2):
            for b in range(3):
                a("v_mfma_f32_16x16x32_bf16 %s, %s, %s, %s" % (vr(accV(b, j)), p1_xf(s, b), W(4 + j), C(accV(b, j))))
    MEAN, RSTD, T = 180, 184, 188
    for b in range(3):
        r = P1_ST + 8*b
        a("v_add_f32 v%d, v%d, v%d" % (r, r, r+1)); a("v_add_f32 v%d, v%d, v%d" % (r+2, r+2, r+3))
        a("v_add_f32 v%d, v%d, v%d" % (r+4, r+4, r+5)); a("v_add_f32 v%d, v%d, v%d" % (r, r, r+2))
        a("v_add_f32 v%d, v%d, v%d" % (r+4, r+4, r+6)); a("v_add_f32 v%d, v%d, v%d" % (r, r, r+4))
        swap_red(a, "v_add_f32", r, r+1, 32)
        a("v_mov_b32 v%d, v%d" % (r+1, r)); a("v_permlane16_swap_b32 v%d, v%d" % (r, r+1))
        mean_rstd(a, r, r+1, MEAN+b, RSTD+b, T)
    a("s_lshl_b32 s16, s%d, 9" % S_W); a("s_add_u32 s16, s16, %d" % LDS_RING)
    a("v_lshl_add_u32 v216, v2, 2, s16")
    a("v_lshrrev_b32 v217, 4, v0"); a("v_lshl_add_u32 v217, v217, 4, s16")
    for b in range(3):
        a("ds_write_b32 v216, v%d offset:%d" % (MEAN+b, 64*b)); a("ds_write_b32 v216, v%d offset:%d" % (RSTD+b, 192 + 64*b))
    MV, RV = 192, 204
    a("s_waitcnt lgkmcnt(0)")
    for b in range(3):
        a("ds_read_b128 %s, v217 offset:%d" % (vr(MV + 4*b), 64*b)); a("ds_read_b128 %s, v217 offset:%d" % (vr(RV + 4*b), 192 + 64*b))
    KF, QF, VP = 80, 92, 100
    for b in range(3):
        for j in range(2):
            for r in range(4):
                x = accK(b, j) + r
                a("v_fma_f32 v%d, -v%d, v%d, v%d" % (x, MEAN+b, P1_C + 8 + 4*j + r, x))
                a("v_mul_f32 v%d, v%d, v%d" % (x, x, RSTD+b))
            for p in range(2):
                a("v_cvt_pk_bf16_f32 v%d, v%d, v%d" % (KF + 4*b + 2*j + p, accK(b, j) + 2*p, accK(b, j) + 2*p + 1))
    for qb in range(2):
        for j in range(2):
            for r in range(4):
                x = accQ(qb, j) + r
                a("v_fma_f32 v%d, -v%d, v%d, v%d" % (x, MEAN+qb+1, P1_C + 4*j + r, x))
                a("v_mul_f32 v%d, v%d, v%d" % (x, x, RSTD+qb+1))
            for p in range(2):
                a("v_cvt_pk_bf16_f32 v%d, v%d, v%d" % (QF + 4*qb + 2*j + p, accQ(qb, j) + 2*p, accQ(qb, j) + 2*p + 1))
    BA, BB, BA0 = 112, 116, 120
    a("v_lshrrev_b32 v218, 4, v0"); a("v_lshlrev_b32 v218, 2, v218"); a("v_sub_u32 v218, v218, v2")
    a("v_mov_b32 v219, %s" % fhex(-1e30))
    for r in range(4):
        a("v_cmp_le_i32 vcc, %d, v218" % (9 - r)); a("v_cndmask_b32 v%d, v219, 0, vcc" % (BA + r))
        a("v_add_u32 v220, %d, v218" % (r + 7)); a("v_cmp_gt_u32 vcc, 8, v220"); a("v_cndmask_b32 v%d, v219, 0, vcc" % (BB + r))
    a("s_cmp_eq_u32 s21, 1"); a("s_cselect_b64 vcc, -1, 0")
    for r in range(4):
        a("v_cndmask_b32 v%d, v219, v%d, vcc" % (BA0 + r, BA + r))
    for qb in range(2):
        a("v_mfma_f32_16x16x32_bf16 %s, %s, %s, %s" % (vr(16 + 8*qb), vr(KF + 4*qb), vr(QF + 4*qb), vr(BA0 if qb == 0 else BA)))
        a("v_mfma_f32_16x16x32_bf16 %s, %s, %s, %s" % (vr(20 + 8*qb), vr(KF + 4*qb + 4), vr(QF + 4*qb), vr(BB)))
    for b in range(3):
        for j in range(2):
            for r in range(4):
                x = accV(b, j) + r
                a("v_fma_f32 v%d, -v%d, v%d, v%d" % (x, MV + 4*b + r, P1_CV + j, x))
                a("v_mul_f32 v%d, v%d, v%d" % (x, x, RV + 4*b + r))
            for p in range(2):
                a("v_cvt_pk_bf16_f32 v%d, v%d, v%d" % (VP + 6*j + 2*b + p, accV(b, j) + 2*p, accV(b, j) + 2*p + 1))
    SC = 28**-0.5 * LOG2E
    a("v_mov_b32 v221, %s" % fhex(SC))
    PF = 32
    for qb in range(2):
        S = 16 + 8*qb; m = 40 + 4*qb; t = m + 1
        a("v_max3_f32 v%d, v%d, v%d, v%d" % (m, S, S+1, S+2)); a("v_max3_f32 v%d, v%d, v%d, v%d" % (t, S+3, S+4, S+5))
        a("v_max3_f32 v%d, v%d, v%d, v%d" % (m, m, S+6, S+7)); a("v_max_f32 v%d, v%d, v%d" % (m, m, t))
    for w in (16, 32):
        for qb in range(2): swap_red(a, "v_max_f32", 40 + 4*qb, 41 + 4*qb, w)
    for qb in range(2):
        S = 16 + 8*qb; m = 40 + 4*qb
        a("v_mul_f32 v%d, v%d, v221" % (m, m))
        for r in range(8): a("v_fma_f32 v%d, v%d, v221, -v%d" % (S + r, S + r, m))
        for r in range(8): a("v_exp_f32 v%d, v%d" % (S + r, S + r))
    for qb in range(2):
        S = 16 + 8*qb; m = 40 + 4*qb; t = m + 1
        a("v_add_f32 v%d, v%d, v%d" % (m, S, S+1)); a("v_add_f32 v%d, v%d, v%d" % (t, S+2, S+3))
        a("v_add_f32 v%d, v%d, v%d" % (m+2, S+4, S+5)); a("v_add_f32 v%d, v%d, v%d" % (m+3, S+6, S+7))
        a("v_add_f32 v%d, v%d, v%d" % (m, m, t)); a("v_add_f32 v%d, v%d, v%d" % (m+2, m+2, m+3)); a("v_add_f32 v%d, v%d, v%d" % (m, m, m+2))
    for w in (16, 32):
        for qb in range(2): swap_red(a, "v_add_f32", 40 + 4*qb, 41 + 4*qb, w)
    for qb in range(2): a("v_rcp_f32 v%d, v%d" % (40 + 4*qb, 40 + 4*qb))
    for qb in range(2):
        S = 16 + 8*qb
        for r in range(8): a("v_mul_f32 v%d, v%d, v%d" % (S + r, S + r, 40 + 4*qb))
        for p in range(4): a("v_cvt_pk_bf16_f32 v%d, v%d, v%d" % (PF + 4*qb + p, S + 2*p, S + 2*p + 1))
    OA = 48
    for qb in range(2):
        for j in range(2):
            a("v_mfma_f32_16x16x32_bf16 %s, %s, %s, 0" % (vr(OA + 8*qb + 4*j), vr(VP + 6*j + 2*qb), vr(PF + 4*qb)))
    a("v_lshlrev_b32 v216, 10, v4"); a("v_lshl_add_u32 v216, v3, 9, v216"); a("v_lshl_add_u32 v216, v2, 4, v216")
    a("s_lshl_b32 s16, s20, 14"); a("s_and_b32 s17, s%d, 15" % S_M); a("s_lshl_b32 s17, s17, 11"); a("s_add_u32 s16, s16, s17")
    a("s_add_u32 s16, s16, %d" % L.O)
    for qb in range(2):
        for p in range(4):
            a("v_cvt_pk_bf16_f32 v%d, v%d, v%d" % (64 + 4*qb + p, OA + 8*qb + 2*p, OA + 8*qb + 2*p + 1))
        a("buffer_store_dwordx4 %s, v216, s[4:7], s16 offen offset:%d%s" % (vr(64 + 4*qb), 256*qb, st))

G_ACC = 16
G_BF = 80
RES = 8
def w2reg(i):
    return ar(112 + 4*i) if i < 36 else vr(176 + 4*(i - 36))
def woreg(i): return ar(112 + 4*i)

def tile_ids(a):
    a("s_mul_i32 s41, s%d, 9363" % S_M); a("s_lshr_b32 s41, s41, 16")
    a("s_mul_i32 s16, s41, 7"); a("s_sub_u32 s40, s%d, s16" % S_M)

def load_wo(a):
    a("s_lshl_b32 s16, s40, 16"); a("s_lshl_b32 s17, s%d, 14" % S_W); a("s_add_u32 s16, s16, s17"); a("s_add_u32 s16, s16, %d" % L.WO)
    load_frags(a, [woreg(i) for i in range(16)], 16)
def load_w2(a, lo=0, hi=56):
    a("s_mul_i32 s16, s40, %d" % (224*1024)); a("s_mul_i32 s17, s%d, %d" % (S_W, 56*1024)); a("s_add_u32 s16, s16, s17"); a("s_add_u32 s16, s16, %d" % L.W2)
    load_frags(a, [w2reg(i) for i in range(lo, hi)], 16, first=lo)

def load_res(a, which, layer, ld=""):
    quad_ids(a)
    if which == 2:
        x16_addr(a, L.X0 if layer == 0 else L.X2)
        for p in range(2): a("buffer_load_dwordx4 %s, v6, s[4:7], s18 offen offset:%d%s" % (vr(RES + 4*p), 512*p, ld))
    else:
        x32_addr(a)
        for p in range(2): a("buffer_load_dwordx4 %s, v1, s[4:7], s18 offen offset:%d%s" % (vr(RES + 4*p), 1024*p, ld))

def quad_ids(a):
    a("s_lshl_b32 s42, s%d, 3" % S_SG); a("s_lshl_b32 s16, s41, 1"); a("s_add_u32 s42, s42, s16"); a("s_lshr_b32 s16, s%d, 1" % S_W); a("s_add_u32 s42, s42, s16")
    a("s_lshl_b32 s43, s40, 1"); a("s_and_b32 s16, s%d, 1" % S_W); a("s_add_u32 s43, s43, s16")
def x16_addr(a, X):
    a("s_mul_i32 s18, s42, 28"); a("s_add_u32 s18, s18, s43"); a("s_lshl_b32 s18, s18, 10"); a("s_add_u32 s18, s18, %d" % X)
    a("v_bfe_u32 v6, v0, 4, 1"); a("v_mul_u32_u24 v6, 14336, v6"); a("v_lshrrev_b32 v7, 5, v0"); a("v_lshl_add_u32 v6, v7, 8, v6")
    a("v_and_b32 v7, 15, v0"); a("v_lshl_add_u32 v6, v7, 4, v6")
def x32_addr(a):
    a("s_mul_i32 s18, s42, 28"); a("s_lshl_b32 s16, s43, 1"); a("s_add_u32 s18, s18, s16"); a("s_lshl_b32 s18, s18, 10"); a("s_add_u32 s18, s18, %d" % L.X1)

def pgemm(a, which, layer, st="", ld="", after_loads=None):
    NS = 8 if which == 2 else 28
    SRC, PITCH = (L.O, 32) if which == 2 else (L.H, 112)
    wreg = woreg if which == 2 else w2reg
    a("; ======== P%d layer %d" % (which, layer))
    a("s_lshl_b32 s20, s%d, 3" % S_SG); a("s_lshl_b32 s16, s41, 1"); a("s_add_u32 s20, s20, s16"); a("s_mul_i32 s20, s20, %d" % PITCH)
    a("s_mul_i32 s16, s%d, %d" % (S_W, NS)); a("s_add_u32 s20, s20, s16"); a("s_lshl_b32 s20, s20, 10"); a("s_add_u32 s20, s20, %d" % SRC)
    a("s_add_u32 s21, s20, %d" % (PITCH*1024))
    DEPTH = 12
    def bf(s, tb): return vr(G_BF + 4*((s % DEPTH)*2 + tb))
    def bload(s):
        if s % 4 == 0 and s:
            a("s_add_u32 s20, s20, 4096"); a("s_add_u32 s21, s21, 4096")
        for tb in range(2):
            a("buffer_load_dwordx4 %s, v1, s[4:7], s%d offen offset:%d%s" % (bf(s, tb), 20 + tb, (s % 4)*1024, ld))
    for s in range(min(DEPTH, NS)): bload(s)
    if NS <= DEPTH and after_loads: after_loads()
    for s in range(NS):
        for tb in range(2):
            for fb in range(2):
                acc = vr(G_ACC + 16*(2*tb + fb), 16)
                a("v_mfma_f32_32x32x16_bf16 %s, %s, %s, %s" % (acc, wreg(2*s + fb), bf(s, tb), "0" if s == 0 else acc))
        if s + DEPTH < NS:
            bload(s + DEPTH)
            if s + DEPTH == NS - 1 and after_loads: after_loads()
    lab = a.label("red")
    a("v_add_u32 v7, %d, v1" % LDS_RING)
    a("s_nop 11")
    for w in range(4):
        a("s_cmp_lg_u32 s%d, %d" % (S_W, w)); a("s_cbranch_scc1 %s_w%d" % (lab, w))
        for q in range(4):
            if q == w: continue
            slot = q*3 + (w if w < q else w - 1)
            for i in range(4):
                a("ds_write_b128 v7, %s offset:%d" % (vr(G_ACC + 16*q + 4*i), slot*4096 + i*1024))
        if w:
            for r in range(16): a("v_mov_b32 v%d, v%d" % (G_ACC + r, G_ACC + 16*w + r))
        a("%s_w%d:" % (lab, w))
    a("s_waitcnt lgkmcnt(0)"); a("s_barrier")
    a("s_mul_i32 s16, s%d, 12288" % S_W); a("v_add_u32 v7, s16, v7")
    for k in range(3):
        for i in range(4):
            a("ds_read_b128 %s, v7 offset:%d" % (vr(32 + 16*k + 4*i), k*4096 + i*1024))
    for p in range(8):
        a("v_lshlrev_b32 v%d, 16, v%d" % (80 + 2*p, RES + p)); a("v_and_b32 v%d, 0xffff0000, v%d" % (81 + 2*p, RES + p))
    for r in range(16): a("v_add_f32 v%d, v%d, v%d" % (16 + r, 16 + r, 80 + r))
    for k in range(3):
        for r in range(16): a("v_add_f32 v%d, v%d, v%d" % (16 + r, 16 + r, 32 + 16*k + r))
    for p in range(8): a("v_cvt_pk_bf16_f32 v%d, v%d, v%d" % (RES + p, 16 + 2*p, 17 + 2*p))
    quad_ids(a)
    final = (which == 4 and layer == 1)
    if final:
        a("s_and_b32 s16, s42, 31"); a("s_lshl_b32 s16, s16, 6"); a("s_lshr_b32 s17, s42, 5"); a("s_add_u32 s16, s16, s17"); a("s_mul_i32 s18, s16, 896")
        a("s_lshl_b32 s16, s43, 6"); a("s_add_u32 s18, s18, s16")
        a("v_and_b32 v6, 31, v0"); a("v_mul_u32_u24 v6, 1792, v6"); a("v_lshrrev_b32 v7, 5, v0"); a("v_lshl_add_u32 v6, v7, 4, v6")
        for p in range(2):
            a("v_permlane32_swap_b32 v%d, v%d" % (RES + 4*p, RES + 4*p + 2)); a("v_permlane32_swap_b32 v%d, v%d" % (RES + 4*p + 1, RES + 4*p + 3))
            a("buffer_store_dwordx4 %s, v6, s[8:11], s18 offen offset:%d" % (vr(RES + 4*p), 32*p))
        return
    if which == 2:
        x32_addr(a)
        for p in range(2): a("buffer_store_dwordx4 %s, v1, s[4:7], s18 offen offset:%d%s" % (vr(RES + 4*p), 1024*p, st))
    else:
        x16_addr(a, L.X2)
        for p in range(2): a("buffer_store_dwordx4 %s, v6, s[4:7], s18 offen offset:%d%s" % (vr(RES + 4*p), 512*p, st))
    a("v_add_f32 v32, v16, v17"); a("v_mul_f32 v33, v16, v16"); a("v_fmac_f32 v33, v17, v17")
    for r in range(2, 16):
        a("v_add_f32 v32, v32, v%d" % (16 + r)); a("v_fmac_f32 v33, v%d, v%d" % (16 + r, 16 + r))
    a("v_permlane32_swap_b32 v32, v33"); a("v_add_f32 v32, v32, v33")
    a("v_lshlrev_b32 v7, 6, v0")
    a("s_lshl_b32 s18, s42, 12"); a("s_lshl_b32 s16, s43, 2"); a("s_add_u32 s18, s18, s16"); a("s_add_u32 s18, s18, %d" % (L.ST1 if which == 2 else L.ST2))
    a("buffer_store_dword v32, v7, s[4:7], s18 offen%s" % st)

P3_ACC = 16
P3_XF = 48
P3_C = 80
P3_T = 96
P3_RING = 74
LDS_P3ST = LDS_RING + P3_RING*1024
def load_w13(a):
    a("s_lshl_b32 s16, s%d, 2" % S_M); a("s_add_u32 s16, s16, s%d" % S_W); a("s_mul_i32 s16, s16, %d" % (28*1024)); a("s_add_u32 s16, s16, %d" % L.W13)
    load_frags(a, [ar(4*i) for i in range(28)], 16)
def load_c13(a):
    a("s_lshl_b32 s16, s%d, 2" % S_M); a("s_add_u32 s16, s16, s%d" % S_W); a("s_lshl_b32 s16, s16, 8"); a("s_add_u32 s16, s16, %d" % L.C13)
    a("v_lshrrev_b32 v2, 5, v0"); a("v_lshlrev_b32 v2, 4, v2")
    for kh in range(2):
        for i in range(4):
            a("buffer_load_dwordx4 %s, v2, s[4:7], s16 offen offset:%d" % (vr(P3_T + 16*kh + 4*i), kh*128 + i*32))
    for r in range(16): a("v_add_f32 v%d, v%d, v%d" % (P3_C + r, P3_T + r, P3_T + 16 + r))

def p3(a, layer, st="", ld=""):
    a("; ======== P3 layer %d" % layer)
    a("s_lshl_b32 s20, s%d, 3" % S_SG); a("s_lshl_b32 s16, s%d, 1" % S_W); a("s_add_u32 s16, s16, s20"); a("s_lshl_b32 s16, s16, 12"); a("s_add_u32 s16, s16, %d" % L.ST1)
    a("s_add_u32 s17, s16, 4096")
    a("v_lshlrev_b32 v7, 6, v0")
    for b in range(2):
        for i in range(3): a("buffer_load_dwordx4 %s, v7, s[4:7], s%d offen offset:%d%s" % (vr(P3_T + 16*b + 4*i), 16 + b, 16*i, ld))
        a("buffer_load_dwordx2 %s, v7, s[4:7], s%d offen offset:48%s" % (vr(P3_T + 16*b + 12, 2), 16 + b, ld))
    a("s_mul_i32 s22, s20, %d" % (28*1024)); a("s_add_u32 s22, s22, %d" % L.X1)
    a("s_mul_i32 s23, s%d, 7168" % S_W); a("s_add_u32 s22, s22, s23")
    def dma(blk):
        a("s_add_u32 s24, s23, %d" % (blk*28*1024 % (P3_RING*1024)))
        for i in range(7):
            a("s_cmp_ge_u32 s24, %d" % (P3_RING*1024)); a("s_cselect_b32 s25, %d, 0" % (P3_RING*1024)); a("s_sub_u32 s24, s24, s25")
            a("s_add_u32 m0, s24, %d" % LDS_RING); a("s_add_u32 s31, s22, %d" % ((blk*28 + i)*1024))
            a("buffer_load_dwordx4 v1, s[4:7], s31 offen%s lds ; @tag x1b%d" % (ld, blk))
            a("s_add_u32 s24, s24, 1024")
    dma(0); dma(1)
    for b in range(2):
        r = P3_T + 16*b
        for i in range(1, 14): a("v_add_f32 v%d, v%d, v%d" % (r, r, r + i))
        a("v_mov_b32 v%d, v%d" % (r+1, r)); a("v_permlane32_swap_b32 v%d, v%d" % (r, r+1))
        mean_rstd(a, r, r+1, r+2, r+3, r+4)
    a("s_lshl_b32 s16, s%d, 9" % S_W); a("s_add_u32 s16, s16, %d" % LDS_P3ST)
    a("v_and_b32 v6, 31, v0"); a("v_lshlrev_b32 v6, 3, v6"); a("v_add_u32 v7, s16, v6")
    for b in range(2): a("ds_write_b64 v7, %s offset:%d" % (vr(P3_T + 16*b + 2, 2), 256*b))
    a("v_add_u32 v6, %d, v6" % LDS_P3ST)
    a("v_add_u32 v4, %d, v1" % LDS_RING); a("v_add_u32 v5, %d, v1" % (LDS_RING + 65536))
    a("s_mul_i32 s26, s20, 112"); a("s_lshl_b32 s16, s%d, 2" % S_M); a("s_add_u32 s26, s26, s16"); a("s_add_u32 s26, s26, s%d" % S_W)
    a("s_lshl_b32 s26, s26, 10"); a("s_add_u32 s26, s26, %d" % L.H)
    def xread(blk, s):
        off = ((blk*28 + s) % P3_RING)*1024
        a("ds_read_b128 %s, %s offset:%d" % (vr(P3_XF + 4*(s % 8)), "v4" if off < 65536 else "v5", off if off < 65536 else off - 65536))
    def epilogue(blk):
        A = P3_ACC + 16*(blk & 1); T = P3_T; e = []
        M, R = T + 24, T + 25
        e.append("ds_read_b64 %s, v6 offset:%d" % (vr(M, 2), 256*blk))
        e.append("v_mul_f32 v%d, v%d, v%d" % (T + 26, R, R))
        e.append("v_mul_f32 v%d, %s, v%d" % (T + 27, fhex(-LOG2E), R))
        for r in range(16): e.append("v_fma_f32 v%d, -v%d, v%d, v%d" % (A + r, M, P3_C + r, A + r))
        for r in range(8): e.append("v_mul_f32 v%d, v%d, v%d" % (T + r, A + r, T + 27))
        for r in range(8): e.append("v_exp_f32 v%d, v%d" % (T + r, T + r))
        for r in range(8): e.append("v_mul_f32 v%d, v%d, v%d" % (A + r, A + r, A + 8 + r))
        for r in range(8): e.append("v_add_f32 v%d, 1.0, v%d" % (T + r, T + r))
        for r in range(8): e.append("v_rcp_f32 v%d, v%d" % (T + r, T + r))
        for r in range(8): e.append("v_mul_f32 v%d, v%d, v%d" % (A + r, A + r, T + 26))
        for r in range(8): e.append("v_mul_f32 v%d, v%d, v%d" % (A + r, A + r, T + r))
        for p in range(4): e.append("v_cvt_pk_bf16_f32 v%d, v%d, v%d" % (T + 16 + p, A + 2*p, A + 2*p + 1))
        e.append("buffer_store_dwordx4 %s, v1, s[4:7], s26 offen%s" % (vr(T + 16), st))
        e.append("s_add_u32 s26, s26, %d" % (112*1024))
        return e
    for blk in range(8):
        a(";@waitvm x1b%d" % blk)
        a("s_waitcnt lgkmcnt(0)")
        a("s_barrier")
        if blk >= 1 and blk + 1 < 8: dma(blk + 1)
        fill = epilogue(blk - 1) if blk else []
        for s in range(6): xread(blk, s)
        acc = vr(P3_ACC + 16*(blk & 1), 16)
        for s in range(28):
            if s + 6 < 28: xread(blk, s + 6)
            a("v_mfma_f32_32x32x16_bf16 %s, %s, %s, %s" % (acc, ar(4*s), vr(P3_XF + 4*(s % 8)), "0" if s == 0 else acc))
            if s >= 3:
                n = -(-len(fill) // (28 - s)) if s < 27 else len(fill)
                n = min(n, 4) if s < 27 else n
                for x in fill[:n]: a(x)
                fill = fill[n:]
    for x in epilogue(7): a(x)

def standalone():
    ks = []
    for layer in range(2):
        n = "p1l%d_kernel" % layer; a = Asm(); a(kernel_begin(n)); prologue(a, n + "_end")
        p1_load_w(a); p1_load_c(a); p1(a, layer); a(n + "_end:"); a("s_endpgm"); ks.append((n, a.text()))
        n = "p2l%d_kernel" % layer; a = Asm(); a(kernel_begin(n)); prologue(a, n + "_end", 28)
        a.uid = 100*layer + 10; tile_ids(a); load_wo(a); load_res(a, 2, layer); pgemm(a, 2, layer); a(n + "_end:"); a("s_endpgm"); ks.append((n, a.text()))
        n = "p3l%d_kernel" % layer; a = Asm(); a(kernel_begin(n)); prologue(a, n + "_end", 28)
        load_w13(a); load_c13(a); p3(a, layer); a(n + "_end:"); a("s_endpgm"); ks.append((n, a.text()))
        n = "p4l%d_kernel" % layer; a = Asm(); a(kernel_begin(n)); prologue(a, n + "_end", 28)
        a.uid = 100*layer + 50; tile_ids(a); load_w2(a); load_res(a, 4, layer); pgemm(a, 4, layer); a(n + "_end:"); a("s_endpgm"); ks.append((n, a.text()))
    return ks

if __name__ == "__main__":
    import sys, gen_prep
    nk = int(sys.argv[2]) if len(sys.argv) > 2 else 8
    pt, pd = gen_prep.emit_prep()
    ks = standalone()[:nk]
    launches = [("prep_kernel", gen_prep.PREP_WGS, 256, 0)] + [(n, 256, 256, LDS_TOTAL) for n, _ in ks]
    txt = file_header(launches) + pt + "".join(lint.finish(t) + "\n" for _, t in ks) + '.section .rodata,"a"\n.p2align 6\n' + pd
    for n, _ in ks: txt += ".p2align 6\n" + descriptor(n, 512, 64, 256)
    open(sys.argv[1], "w").write(txt)
```

```python
from asmlib import *
import layout as L

N_W13, N_QKV, N_WO, N_W2, N_X0 = 112, 48, 28, 56, 32
PREP_WGS = N_W13 + N_QKV + N_WO + N_W2 + N_X0

def srd(a, d, lo, hi, size):
    a("s_mov_b32 s%d, s%d" % (d, lo))
    a("s_and_b32 s%d, s%d, 0xffff" % (d+1, hi))
    a("s_mov_b32 s%d, %d" % (d+2, size))
    a("s_mov_b32 s%d, 0x20000" % (d+3))

def gather(a, nfr, soff_fn, vaddr_fn, base=32):
    for i in range(nfr):
        for e in range(8):
            a("s_add_u32 s17, s16, %d" % soff_fn(i, e))
            a("buffer_load_ushort v%d, %s, s[8:11], s17 offen" % (base+8*i+e, vaddr_fn(i, e)))

def pack(a, i, nfr, dst, base=32):
    a("s_waitcnt vmcnt(%d)" % (8*(nfr-1-i) + i))
    for p in range(4):
        a("v_lshl_or_b32 v%d, v%d, 16, v%d" % (dst+p, base+8*i+2*p+1, base+8*i+2*p))

def red16_32(a, v, t):
    a("v_mov_b32 v%d, v%d" % (t, v)); a("s_nop 1")
    a("v_permlane16_swap_b32 v%d, v%d" % (v, t)); a("v_add_f32 v%d, v%d, v%d" % (v, v, t))
    a("v_mov_b32 v%d, v%d" % (t, v)); a("s_nop 1")
    a("v_permlane32_swap_b32 v%d, v%d" % (v, t)); a("v_add_f32 v%d, v%d, v%d" % (v, v, t))

def colsum_acc(a, src, first):
    for p in range(4):
        if first and p == 0:
            a("v_dot2_f32_bf16 v10, v%d, v11, 0" % (src+p))
        else:
            a("v_dot2_f32_bf16 v10, v%d, v11, v10" % (src+p))

def emit_prep(name="prep_kernel"):
    a = Asm()
    a(kernel_begin(name))
    a("s_cmp_ge_u32 s2, %d" % PREP_WGS); a("s_cbranch_scc1 PREP_END")
    a("s_load_dwordx4 s[20:23], s[0:1], 0")
    a("s_load_dwordx2 s[24:25], s[0:1], 16")
    a("s_load_dwordx4 s[28:31], s[0:1], 32")
    a("s_load_dwordx2 s[32:33], s[0:1], 48")
    a("s_load_dwordx2 s[34:35], s[0:1], 72")
    a("v_lshrrev_b32 v2, 6, v0"); a("v_and_b32 v0, 63, v0")
    a("v_readfirstlane_b32 s14, v2")
    a("v_lshlrev_b32 v1, 4, v0")
    a("v_mov_b32 v11, 0x3f803f80")
    a("v_bfrev_b32 v12, 1")
    a("s_waitcnt lgkmcnt(0)")
    srd(a, 4, 34, 35, L.END)
    a("s_cmp_lt_u32 s2, %d" % N_W13); a("s_cbranch_scc1 PREP_W13")
    a("s_cmp_lt_u32 s2, %d" % (N_W13+N_QKV)); a("s_cbranch_scc1 PREP_QKV")
    a("s_cmp_lt_u32 s2, %d" % (N_W13+N_QKV+N_WO)); a("s_cbranch_scc1 PREP_WO")
    a("s_cmp_lt_u32 s2, %d" % (N_W13+N_QKV+N_WO+N_W2)); a("s_cbranch_scc1 PREP_W2")
    a("s_branch PREP_X0")

    a("PREP_W13:")
    a("s_cmp_lt_u32 s14, 2")
    a("s_cselect_b32 s36, s28, s30"); a("s_cselect_b32 s37, s29, s31")
    srd(a, 8, 36, 37, 448*3584)
    a("v_and_b32 v2, 15, v0"); a("v_bfe_u32 v3, v0, 4, 1"); a("v_lshrrev_b32 v4, 5, v0")
    a("v_lshlrev_b32 v5, 4, v4"); a("v_lshl_add_u32 v5, v3, 2, v5"); a("v_mul_u32_u24 v5, 3584, v5")
    a("v_lshl_add_u32 v5, v2, 1, v5")
    a("s_and_b32 s15, s14, 1")
    a("s_mul_i32 s16, s15, %d" % (14*16*3584)); a("s_lshl_b32 s18, s2, 5"); a("s_add_u32 s16, s16, s18")
    gather(a, 7, lambda i, e: (32*i + 8*(e >> 2) + (e & 3))*3584, lambda i, e: "v5")
    a("s_lshr_b32 s19, s14, 1")
    a("v_lshlrev_b32 v6, 10, v4"); a("v_lshl_add_u32 v6, v3, 9, v6"); a("v_lshl_add_u32 v6, v2, 4, v6")
    a("s_lshl_b32 s18, s19, 8"); a("v_add_u32 v6, s18, v6")
    a("s_mul_i32 s18, s2, 28"); a("s_mul_i32 s17, s15, 14"); a("s_add_u32 s18, s18, s17"); a("s_lshl_b32 s18, s18, 10")
    a("s_add_u32 s18, s18, %d" % L.W13)
    for i in range(7):
        pack(a, i, 7, 16+4*(i & 1))
        colsum_acc(a, 16+4*(i & 1), i == 0)
        a("buffer_store_dwordx4 v[%d:%d], v6, s[4:7], s18 offen" % (16+4*(i & 1), 19+4*(i & 1)))
        a("s_add_u32 s18, s18, 2048")
    a("s_nop 2")
    red16_32(a, 10, 13)
    a("s_lshl_b32 s18, s2, 8"); a("s_lshl_b32 s17, s15, 7"); a("s_add_u32 s18, s18, s17")
    a("s_lshl_b32 s17, s19, 6"); a("s_add_u32 s18, s18, s17"); a("s_add_u32 s18, s18, %d" % L.C13)
    a("v_lshlrev_b32 v7, 2, v2")
    a("buffer_store_dword v10, v7, s[4:7], s18 offen")
    a("s_branch PREP_END")

    a("PREP_QKV:")
    srd(a, 8, 22, 23, 448*2688)
    a("s_sub_u32 s15, s2, %d" % N_W13); a("s_lshl_b32 s15, s15, 2"); a("s_add_u32 s15, s15, s14")
    a("s_mul_i32 s38, s15, 43691"); a("s_lshr_b32 s38, s38, 19")
    a("s_mul_i32 s17, s38, 12"); a("s_sub_u32 s39, s15, s17")
    a("s_and_b32 s40, s39, 1"); a("s_lshr_b32 s39, s39, 1")
    a("s_and_b32 s41, s39, 1"); a("s_lshr_b32 s42, s39, 1")
    a("v_and_b32 v2, 15, v0"); a("v_bfe_u32 v3, v0, 4, 1"); a("v_lshrrev_b32 v4, 5, v0")
    a("v_lshlrev_b32 v5, 4, v4"); a("v_lshl_add_u32 v5, v3, 2, v5"); a("v_mul_u32_u24 v5, 2688, v5")
    a("v_lshl_add_u32 v5, v2, 1, v5")
    a("s_lshl_b32 s17, s41, 4"); a("v_add_u32 v8, s17, v2")
    a("v_cmp_le_u32 vcc, 28, v8"); a("s_nop 1"); a("v_cndmask_b32 v5, v5, v12, vcc")
    a("s_mul_i32 s16, s40, %d" % (7*32*2688)); a("s_mul_i32 s17, s42, 896"); a("s_add_u32 s16, s16, s17")
    a("s_mul_i32 s17, s38, 56"); a("s_add_u32 s16, s16, s17"); a("s_lshl_b32 s17, s41, 5"); a("s_add_u32 s16, s16, s17")
    gather(a, 7, lambda i, e: (32*i + 8*(e >> 2) + (e & 3))*2688, lambda i, e: "v5")
    a("s_mul_i32 s18, s38, 14"); a("s_mul_i32 s17, s40, 7"); a("s_add_u32 s18, s18, s17"); a("s_mul_i32 s18, s18, 6")
    a("s_add_u32 s18, s18, s39"); a("s_lshl_b32 s18, s18, 10"); a("s_add_u32 s18, s18, %d" % L.WQKV)
    for i in range(7):
        pack(a, i, 7, 16+4*(i & 1))
        colsum_acc(a, 16+4*(i & 1), i == 0)
        a("buffer_store_dwordx4 v[%d:%d], v1, s[4:7], s18 offen" % (16+4*(i & 1), 19+4*(i & 1)))
        a("s_add_u32 s18, s18, 6144")
    a("s_nop 2")
    red16_32(a, 10, 13)
    a("s_lshl_b32 s18, s15, 6"); a("s_add_u32 s18, s18, %d" % L.CQKV)
    a("v_lshlrev_b32 v7, 2, v2")
    a("buffer_store_dword v10, v7, s[4:7], s18 offen")
    a("s_branch PREP_END")

    a("PREP_WO:")
    srd(a, 8, 24, 25, 448*896)
    a("s_sub_u32 s15, s2, %d" % (N_W13+N_QKV)); a("s_lshl_b32 s15, s15, 2"); a("s_add_u32 s15, s15, s14")
    a("s_lshr_b32 s38, s15, 4"); a("s_and_b32 s39, s15, 15")
    a("v_and_b32 v2, 31, v0"); a("v_lshrrev_b32 v3, 5, v0")
    a("v_mul_u32_u24 v5, %d, v3" % (4*896)); a("v_lshl_add_u32 v5, v2, 1, v5")
    a("v_cmp_eq_u32 vcc, 1, v3"); a("s_nop 1"); a("v_cndmask_b32 v8, v5, v12, vcc")
    a("s_mul_i32 s16, s39, %d" % (28*896)); a("s_lshl_b32 s17, s38, 7"); a("s_add_u32 s16, s16, s17")
    gather(a, 4, lambda i, e: (16*(e >> 2) + 8*(i >> 1) + (e & 3))*896 + 64*(i & 1),
           lambda i, e: "v8" if ((i >> 1) == 1 and e >= 4) else "v5")
    a("s_lshl_b32 s18, s15, 12"); a("s_add_u32 s18, s18, %d" % L.WO)
    a("s_bfe_u32 s17, s39, 0x10002"); a("s_lshl_b32 s17, s17, 10")
    a("s_add_u32 s40, s18, s17"); a("s_sub_u32 s41, s18, s17")
    for i in range(4):
        pack(a, i, 4, 16+4*(i & 1))
        a("buffer_store_dwordx4 v[%d:%d], v1, s[4:7], s%d offen offset:%d" % (16+4*(i & 1), 19+4*(i & 1), 40 + (i & 1), 1024*i))
    a("s_branch PREP_END")

    a("PREP_W2:")
    srd(a, 8, 32, 33, 1792*896)
    a("s_sub_u32 s15, s2, %d" % (N_W13+N_QKV+N_WO)); a("s_lshl_b32 s15, s15, 2"); a("s_add_u32 s15, s15, s14")
    a("s_lshr_b32 s38, s15, 5"); a("s_bfe_u32 s39, s15, 0x10004"); a("s_and_b32 s40, s15, 15")
    a("v_and_b32 v2, 31, v0"); a("v_lshrrev_b32 v3, 5, v0")
    a("v_mul_u32_u24 v5, %d, v3" % (4*896)); a("v_lshl_add_u32 v5, v2, 1, v5")
    a("s_mul_i32 s16, s40, %d" % (7*16*896)); a("s_lshl_b32 s17, s38, 7"); a("s_add_u32 s16, s16, s17")
    a("s_lshl_b32 s17, s39, 6"); a("s_add_u32 s16, s16, s17")
    gather(a, 7, lambda i, e: (16*i + 8*(e >> 2) + (e & 3))*896, lambda i, e: "v5")
    a("s_mul_i32 s18, s38, 112"); a("s_mul_i32 s17, s40, 7"); a("s_add_u32 s18, s18, s17"); a("s_lshl_b32 s18, s18, 1")
    a("s_bfe_u32 s17, s40, 0x10002"); a("s_xor_b32 s17, s17, s39")
    a("s_add_u32 s18, s18, s17"); a("s_lshl_b32 s18, s18, 10"); a("s_add_u32 s18, s18, %d" % L.W2)
    for i in range(7):
        pack(a, i, 7, 16+4*(i & 1))
        a("buffer_store_dwordx4 v[%d:%d], v1, s[4:7], s18 offen" % (16+4*(i & 1), 19+4*(i & 1)))
        a("s_add_u32 s18, s18, 2048")
    a("s_branch PREP_END")

    a("PREP_X0:")
    srd(a, 8, 20, 21, 2048*896)
    a("s_sub_u32 s15, s2, %d" % (N_W13+N_QKV+N_WO+N_W2)); a("s_lshl_b32 s15, s15, 2"); a("s_add_u32 s15, s15, s14")
    a("v_and_b32 v2, 15, v0"); a("v_bfe_u32 v3, v0, 4, 1"); a("v_lshrrev_b32 v4, 5, v0")
    a("s_and_b32 s16, s15, 63"); a("s_lshl_b32 s16, s16, 5"); a("s_lshr_b32 s17, s15, 6"); a("s_add_u32 s16, s16, s17")
    a("s_mul_i32 s16, s16, 896")
    a("v_mul_u32_u24 v5, 1792, v2"); a("v_lshl_add_u32 v5, v4, 5, v5"); a("v_lshl_add_u32 v5, v3, 3, v5")
    for s in range(14):
        a("buffer_load_dwordx2 v[%d:%d], v5, s[8:11], s16 offen offset:%d" % (32+4*s, 33+4*s, 64*s))
        a("buffer_load_dwordx2 v[%d:%d], v5, s[8:11], s16 offen offset:%d" % (34+4*s, 35+4*s, 64*s+16))
    a("s_mul_i32 s18, s15, %d" % (14*1024)); a("s_add_u32 s18, s18, %d" % L.X0)
    a("v_mov_b32 v10, 0"); a("v_mov_b32 v9, 0")
    for s in range(14):
        a("s_waitcnt vmcnt(%d)" % (2*(13-s) + s))
        a("buffer_store_dwordx4 v[%d:%d], v1, s[4:7], s18 offen" % (32+4*s, 35+4*s))
        a("s_add_u32 s18, s18, 1024")
        for p in range(4):
            a("v_dot2_f32_bf16 v10, v%d, v11, v10" % (32+4*s+p))
            a("v_dot2_f32_bf16 v9, v%d, v%d, v9" % (32+4*s+p, 32+4*s+p))
    a("s_nop 2")
    red16_32(a, 10, 13); red16_32(a, 9, 13)
    a("v_cmp_eq_u32 vcc, 1, v3"); a("s_nop 1"); a("v_cndmask_b32 v16, v10, v9, vcc")
    a("v_cmp_eq_u32 vcc, 1, v4"); a("s_nop 1"); a("v_cndmask_b32 v16, v16, 0, vcc")
    a("v_mov_b32 v17, 0")
    a("v_lshlrev_b32 v6, 8, v4"); a("v_lshl_add_u32 v6, v3, 7, v6"); a("v_lshl_add_u32 v6, v2, 2, v6")
    a("s_lshr_b32 s18, s15, 1"); a("s_lshl_b32 s18, s18, 12"); a("s_and_b32 s17, s15, 1"); a("s_lshl_b32 s17, s17, 6")
    a("s_add_u32 s18, s18, s17"); a("s_add_u32 s18, s18, %d" % L.ST0)
    for i in range(7):
        a("buffer_store_dword v%d, v6, s[4:7], s18 offen offset:%d" % (16 if i == 0 else 17, 512*i))
    a("s_lshl_b32 s18, s15, 7"); a("s_add_u32 s18, s18, %d" % L.FLG)
    a("v_lshlrev_b32 v6, 2, v0"); a("v_cmp_gt_u32 vcc, 32, v0"); a("s_nop 1"); a("v_cndmask_b32 v6, v12, v6, vcc")
    a("buffer_store_dword v17, v6, s[4:7], s18 offen")
    a("PREP_END:")
    a("s_endpgm")
    return a.text(), descriptor(name, 96, 48, 96)

if __name__ == "__main__":
    t, d = emit_prep()
    open("prep_only.s", "w").write(file_header([("prep_kernel", PREP_WGS, 256, 0)]) + t + '.section .rodata,"a"\n.p2align 6\n' + d)
```

```python
from asmlib import *
import layout as L
import lint, struct

LOG2E = 1.4426950408889634
def fhex(x): return "0x%08x" % struct.unpack("<I", struct.pack("<f", x))[0]
def vr(b, n=4): return "v[%d:%d]" % (b, b+n-1)
def ar(b, n=4): return "a[%d:%d]" % (b, b+n-1)

S_SG, S_M, S_W = 12, 13, 14
LDS_WQKV = 0
LDS_RING = 86016
SUBRING = 18
LDS_ST = LDS_RING + 4*SUBRING*1024
LDS_TOTAL = 163840
OPT = dict(pf1=1)

STAMPS = False
_st = {"n": 0}
STNAMES = []
def stamp(a, name=""):
    if not STAMPS: return
    i = _st["n"]; _st["n"] += 1
    assert 50 + i < 98
    a("s_memtime s[98:99] ; stamp %s" % name); a("s_waitcnt lgkmcnt(0)"); a("s_mov_b32 s%d, s98" % (50 + i))
    STNAMES.append(name)
def stamp_flush(a):
    if not STAMPS: return
    l = a.label("st")
    a("s_waitcnt vmcnt(0) lgkmcnt(0)")
    a("s_cmp_lg_u32 s%d, 0" % S_W); a("s_cbranch_scc1 %s" % l)
    a("s_lshl_b32 s46, s2, 8"); a("s_add_u32 s46, s46, %d" % L.TS)
    a("s_mov_b64 exec, 1")
    for i in range(_st["n"]):
        a("v_mov_b32 v2, s%d" % (50 + i)); a("buffer_store_dword v2, off, s[4:7], s46 offset:%d" % (4*i))
    a("%s:" % l)

def srd(a, d, lo, hi, size):
    a("s_mov_b32 s%d, s%d" % (d, lo)); a("s_and_b32 s%d, s%d, 0xffff" % (d+1, hi))
    a("s_mov_b32 s%d, %d" % (d+2, size)); a("s_mov_b32 s%d, 0x20000" % (d+3))

def wstore(layer, op, data, vaddr, soff, off=0, force_global=False):
    o = (" offset:%d" % off) if off else ""
    if layer == 0 or force_global:
        return ["%s %s, %s, s[4:7], %s offen%s sc1" % (op, data, vaddr, soff, o)]
    return ["%s %s, %s, s[32:35], %s offen%s" % (op, data, vaddr, soff, o),
            "%s %s, %s, s[36:39], %s offen%s sc1" % (op, data, vaddr, soff, o)]

class PF:
    def __init__(self): self.q = []
    def add(self, dsts, setup, first=0):
        cur = None
        for i, d in enumerate(dsts):
            off = (first + i)*1024; base = off // 4096 * 4096; it = []
            if i == 0: it += setup
            if base != cur: it.append("s_add_u32 s29, s30, %d" % base); cur = base
            it.append("buffer_load_dwordx4 %s, v1, s[4:7], s29 offen offset:%d" % (d, off - base))
            self.q.append(it)
    def take(self, n=1):
        r = [l for it in self.q[:n] for l in it]; self.q = self.q[n:]; return r
    def flush(self, a):
        for l in self.take(len(self.q)): a(l)

TRANS = ("v_exp_f32", "v_rcp_f32", "v_rsq_f32")
def cost(l):
    if l.startswith(";"): return 0
    return 8 if l.split()[0] in TRANS else 4

class Sched:
    def __init__(self, budget):
        self.m = []; self.pre = []; self.g = []; self.budget = budget
    def mfma(self, l, pre=()):
        self.m.append(l); self.pre.append(list(pre)); self.g.append([])
    def put(self, i, lines):
        self.g[i] += list(lines)
    def used(self, i): return sum(cost(l) for l in self.g[i]) + (sum(cost(l) for l in self.pre[i+1]) if i + 1 < len(self.m) else 0)
    def flow(self, lines, start, end=None):
        end = len(self.m) if end is None else end
        i = start; lines = list(lines)
        while lines and i < end:
            if self.used(i) + cost(lines[0]) <= self.budget: self.g[i].append(lines.pop(0))
            else: i += 1
        self.last = i
        return lines
    def emit(self, a):
        for l, p, g in zip(self.m, self.pre, self.g):
            for x in p: a(x)
            a(l)
            for x in g: a(x)

def swap_red(op, v, t, which):
    return ["v_mov_b32 v%d, v%d" % (t, v), "v_permlane%d_swap_b32 v%d, v%d" % (which, v, t), "%s v%d, v%d, v%d" % (op, v, v, t)]

def stats_loads(dst, sreg, voob, ld=" sc1"):
    return ["buffer_load_dwordx4 %s, %s, s[4:7], s%d offen offset:%d%s" % (vr(dst + 4*i), "v1" if i < 3 else voob, sreg, 1024*i, ld) for i in range(4)]
def stats_reduce(r):
    e = []
    for k in range(4):
        e += ["v_add_f32 v%d, v%d, v%d" % (r+k, r+k, r+4+k), "v_add_f32 v%d, v%d, v%d" % (r+8+k, r+8+k, r+12+k)]
    for k in range(4): e.append("v_add_f32 v%d, v%d, v%d" % (r+k, r+k, r+8+k))
    e += ["v_permlane32_swap_b32 v%d, v%d" % (r, r+2), "v_permlane32_swap_b32 v%d, v%d" % (r+1, r+3),
          "v_add_f32 v%d, v%d, v%d" % (r, r, r+2), "v_add_f32 v%d, v%d, v%d" % (r+1, r+1, r+3),
          "v_permlane16_swap_b32 v%d, v%d" % (r, r+1), "v_add_f32 v%d, v%d, v%d" % (r, r, r+1),
          "v_mul_f32 v%d, %s, v%d" % (r, fhex(1.0/448), r),
          "v_mov_b32_dpp v%d, v%d row_ror:8 row_mask:0xf bank_mask:0xf" % (r+1, r),
          "v_fma_f32 v%d, -v%d, v%d, v%d" % (r+1, r, r, r+1),
          "v_max_f32 v%d, 0, v%d" % (r+1, r+1), "v_add_f32 v%d, %s, v%d" % (r+1, fhex(1e-5), r+1)]
    return e

P1_ACC, P1_WF = 16, 80
P1_C, P1_MV, P1_BIAS = 128, 144, 156
P1_CV, P1_MQ = 5, 2
P1_RAW = 224
def p1_xf(s, b):
    i = s*3 + b
    return ar(176 + 4*i) if i < 20 else vr(168 + 4*(i-20))
def accQ(qb, j): return P1_ACC + 4*(qb*2 + j)
def accK(b, j): return P1_ACC + 16 + 4*(b*2 + j)
def accV(b, j): return P1_ACC + 40 + 4*(b*2 + j)

def p1_load_w(a):
    a("s_and_b32 s16, s%d, 15" % S_M); a("s_mul_i32 s16, s16, 86016"); a("s_mul_i32 s17, s%d, %d" % (S_W, 21*1024))
    a("s_add_u32 s16, s16, s17"); a("s_add_u32 s16, s16, %d" % L.WQKV)
    for i in range(21):
        if i % 4 == 0:
            a("s_add_u32 m0, s17, %d" % (LDS_WQKV + i*1024)); a("s_add_u32 s31, s16, %d" % (i*1024))
        a("buffer_load_dwordx4 v1, s[4:7], s31 offen offset:%d lds ; @tag wqkv" % ((i % 4)*1024))

def p1_pre(a, layer):
    X = L.X0 if layer == 0 else L.X2
    ST = L.ST0 if layer == 0 else L.ST2
    a("s_and_b32 s16, s%d, 15" % S_M); a("s_mul_i32 s16, s16, 768"); a("s_add_u32 s16, s16, %d" % L.CQKV)
    a("v_lshrrev_b32 v2, 4, v0"); a("v_lshlrev_b32 v2, 4, v2"); a("v_and_b32 v3, 15, v0"); a("v_lshlrev_b32 v3, 2, v3")
    for fr in range(4):
        for kh in range(2):
            a("buffer_load_dwordx4 %s, v2, s[4:7], s16 offen offset:%d" % (vr(16 + 8*fr + 4*kh), fr*128 + kh*64))
    for fr in range(4, 6):
        for kh in range(2):
            a("buffer_load_dword v%d, v3, s[4:7], s16 offen offset:%d" % (48 + 2*(fr-4) + kh, fr*128 + kh*64))
    a("s_lshl_b32 s20, s%d, 4" % S_SG); a("s_lshr_b32 s16, s%d, 4" % S_M); a("s_lshl_b32 s16, s16, 3"); a("s_add_u32 s20, s20, s16")
    a("s_lshl_b32 s16, s%d, 1" % S_W); a("s_add_u32 s20, s20, s16")
    a("s_and_b32 s16, s20, 63"); a("s_cmp_eq_u32 s16, 0"); a("s_cselect_b32 s21, 0, 1")
    a("s_sub_u32 s22, s20, s21")
    a("s_mul_i32 s23, s22, 14336"); a("s_add_u32 s23, s23, %d" % X)
    a("s_mul_i32 s24, s20, 14336"); a("s_add_u32 s24, s24, %d" % X); a("s_add_u32 s25, s24, 14336")
    a("s_lshl_b32 s27, s20, 11"); a("s_add_u32 s27, s27, %d" % ST)
    a("s_lshl_b32 s16, s21, 12"); a("s_sub_u32 s26, s27, s16")
    a("s_lshl_b32 s28, s20, 14"); a("s_and_b32 s17, s%d, 15" % S_M); a("s_lshl_b32 s17, s17, 11"); a("s_add_u32 s28, s28, s17"); a("s_add_u32 s28, s28, %d" % L.O)
    BA, BB, BA0 = P1_BIAS, P1_BIAS + 4, P1_BIAS + 8
    a("v_lshrrev_b32 v60, 2, v2"); a("v_lshrrev_b32 v61, 2, v3"); a("v_sub_u32 v60, v60, v61")
    a("v_mov_b32 v62, %s" % fhex(-1e30))
    for r in range(4):
        a("v_cmp_le_i32 vcc, %d, v60" % (9 - r)); a("v_cndmask_b32 v%d, v62, 0, vcc" % (BA + r))
        a("v_add_u32 v63, %d, v60" % (r + 7)); a("v_cmp_gt_u32 vcc, 8, v63"); a("v_cndmask_b32 v%d, v62, 0, vcc" % (BB + r))
    a("s_cmp_eq_u32 s21, 1"); a("s_cselect_b64 vcc, -1, 0")
    for r in range(4): a("v_cndmask_b32 v%d, v62, v%d, vcc" % (BA0 + r, BA + r))
    for fr in range(4):
        for r in range(4): a("v_add_f32 v%d, v%d, v%d" % (P1_C + 4*fr + r, 16 + 8*fr + r, 20 + 8*fr + r))
    for j in range(2): a("v_add_f32 v%d, v%d, v%d" % (P1_CV + j, 48 + 2*j, 49 + 2*j))
    a("v_add_u32 v7, 0x10000, v1")
    a("v_cmp_gt_u32 vcc, 32, v0"); a("v_bfrev_b32 v79, 1"); a("v_cndmask_b32 v79, v79, v1, vcc")

def p1(a, layer, pf, after_first=None, pf_sched=None):
    ld = " sc1"
    a("; ======== P1 layer %d" % layer)
    for l in stats_loads(P1_RAW, 26, "v79") + stats_loads(P1_RAW + 16, 27, "v79"): a(l)
    def xload(s):
        e = []
        if s % 4 == 0 and s: e += ["s_add_u32 s%d, s%d, 4096" % (r, r) for r in (23, 24, 25)]
        e += ["buffer_load_dwordx4 %s, v1, s[4:7], s%d offen offset:%d%s" % (p1_xf(s, b), 23 + b, (s % 4)*1024, ld) for b in range(3)]
        return e
    AHEAD = 4
    for s in range(AHEAD):
        for l in xload(s): a(l)
    if after_first: after_first()
    stamp(a, "p1 issued")
    ORD = [2, 3, 0, 1, 4, 5]
    def wread(s):
        e = []
        for fr in ORD:
            off = LDS_WQKV + (s*6 + fr)*1024
            e.append("ds_read_b128 %s, %s offset:%d" % (vr(P1_WF + 24*(s & 1) + 4*fr), "v1" if off < 65536 else "v7", off % 65536))
        return e
    for l in wread(0): a(l)
    S = Sched(8)
    groups = []
    for s in range(14):
        W = lambda fr: vr(P1_WF + 24*(s & 1) + 4*fr)
        C = lambda r: "0" if s == 0 else vr(r)
        seq = []
        for j in range(2):
            for b in (2, 1, 0): seq.append((accK(b, j), W(2 + j), p1_xf(s, b)))
        for j in range(2):
            for qb in range(2): seq.append((accQ(qb, j), W(j), p1_xf(s, qb + 1)))
        for j in range(2):
            for b in range(3): seq.append((accV(b, j), p1_xf(s, b), W(4 + j)))
        groups = [x[0] for x in seq]
        for k, (d, A, B) in enumerate(seq):
            S.mfma("v_mfma_f32_16x16x32_bf16 %s, %s, %s, %s" % (vr(d), A, B, C(d)), pre=["s_waitcnt lgkmcnt(0)"] if k == 0 else [])
    for s in range(14):
        if s + 1 < 14:
            for k, l in enumerate(wread(s + 1)): S.put(16*s + k, [l])
        if s + AHEAD < 14:
            xs = xload(s + AHEAD); sal = [x for x in xs if x.startswith("s_")]; vm = [x for x in xs if not x.startswith("s_")]
            S.put(16*s + 6, sal[:2]); S.put(16*s + 7, sal[2:] + vm[:1]); S.put(16*s + 10, vm[1:2]); S.put(16*s + 13, vm[2:])
        n = pf_sched[s] if pf_sched else 0
        for g in sorted((15, 9, 12, 6)[:n]): S.put(16*s + g, pf.take(1))
    ch = ["s_lshl_b32 s16, s%d, 10" % S_W, "s_add_u32 s16, s16, %d" % LDS_RING]
    R0, R1 = P1_RAW, P1_RAW + 16
    r0, r1 = stats_reduce(R0), stats_reduce(R1)
    for x, y in zip(r0, r1): ch += [x, y]
    ch += ["v_rsq_f32 v%d, v%d" % (R0+1, R0+1), "v_rsq_f32 v%d, v%d" % (R1+1, R1+1)]
    T = R0 + 4
    ch += ["v_and_b32 v%d, 7, v0" % T, "v_lshrrev_b32 v%d, 4, v0" % (T+1), "v_lshl_add_u32 v%d, v%d, 2, v%d" % (T, T, T+1), "v_lshl_add_u32 v%d, v%d, 2, s16" % (T, T),
           "v_and_b32 v%d, 15, v0" % (T+2), "v_lshl_add_u32 v%d, v%d, 2, s16" % (T+2, T+2), "v_lshl_add_u32 v%d, v%d, 4, s16" % (T+3, T+1),
           "s_mov_b32 exec_lo, 0x00ff00ff", "s_mov_b32 exec_hi, 0x00ff00ff",
           "ds_write2_b32 v%d, v%d, v%d offset0:0 offset1:64" % (T, R0, R0+1), "ds_write2_b32 v%d, v%d, v%d offset0:32 offset1:96" % (T, R1, R1+1),
           "s_mov_b64 exec, -1", "s_waitcnt lgkmcnt(0)"]
    for b in range(3): ch.append("ds_read_b32 v%d, v%d offset:%d" % (P1_MQ + b, T+2, 64 + 64*b))
    for b in range(3): ch.append("ds_read_b128 %s, v%d offset:%d" % (vr(P1_MV + 4*b), T+3, 64 + 64*b))
    i0 = ch.index("s_mov_b32 exec_lo, 0x00ff00ff")
    left = S.flow(ch[:i0], 16*1 + 8, 16*6); assert not left
    g = S.last + 1
    S.put(g, ch[i0:i0+5] + ["s_nop 3"]); left = S.flow(ch[i0+5:], g + 1, 16*7); assert not left
    cm = {}
    for b in range(3):
        for j in range(2):
            cm[accK(b, j)] = ["v_fma_f32 v%d, -v%d, v%d, v%d" % (accK(b, j)+r, P1_MQ+b, P1_C+8+4*j+r, accK(b, j)+r) for r in range(4)]
            cm[accV(b, j)] = ["v_fma_f32 v%d, -v%d, v%d, v%d" % (accV(b, j)+r, P1_MV+4*b+r, P1_CV+j, accV(b, j)+r) for r in range(4)]
    for qb in range(2):
        for j in range(2):
            cm[accQ(qb, j)] = ["v_fma_f32 v%d, -v%d, v%d, v%d" % (accQ(qb, j)+r, P1_MQ+qb+1, P1_C+4*j+r, accQ(qb, j)+r) for r in range(4)]
    done = {k: 0 for k in range(16)}
    for gap in range(16*8, 16*14 - 4):
        for k in range(16):
            dist = (gap - k) % 16
            while done[k] < 4 and 6 <= dist <= 13 and S.used(gap) + 4 <= 8:
                S.put(gap, [cm[groups[k]][done[k]]]); done[k] += 1
    assert all(v == 4 for v in done.values()), done
    S.emit(a)
    stamp(a, "p1 kloop done")
    RQ, RV = 168, 172
    a("s_lshl_b32 s16, s%d, 10" % S_W); a("s_add_u32 s16, s16, %d" % LDS_RING)
    a("v_and_b32 v2, 15, v0"); a("v_lshrrev_b32 v3, 4, v0")
    a("v_lshl_add_u32 v184, v2, 2, s16"); a("v_lshl_add_u32 v185, v3, 4, s16")
    for b in range(3): a("ds_read_b32 v%d, v184 offset:%d" % (RQ + b, 256 + 64 + 64*b))
    for b in range(3): a("ds_read_b128 %s, v185 offset:%d" % (vr(RV + 4*b), 256 + 64 + 64*b))
    KF, QF, VP = 80, 92, 100
    for qb in range(2):
        for j in range(2):
            for p in range(2): a("v_cvt_pk_bf16_f32 v%d, v%d, v%d" % (QF + 4*qb + 2*j + p, accQ(qb, j) + 2*p, accQ(qb, j) + 2*p + 1))
    for b in range(3):
        for j in range(2):
            for r in range(4): a("v_mul_f32 v%d, v%d, v%d" % (accK(b, j)+r, accK(b, j)+r, RQ+b))
            for p in range(2): a("v_cvt_pk_bf16_f32 v%d, v%d, v%d" % (KF + 4*b + 2*j + p, accK(b, j) + 2*p, accK(b, j) + 2*p + 1))
    BA, BB, BA0 = P1_BIAS, P1_BIAS + 4, P1_BIAS + 8
    SC = 28**-0.5 * LOG2E
    for qb in range(2): a("v_mul_f32 v%d, %s, v%d" % (186 + qb, fhex(SC), RQ + 1 + qb))
    for qb in range(2):
        a("v_mfma_f32_16x16x32_bf16 %s, %s, %s, %s" % (vr(16 + 8*qb), vr(KF + 4*qb), vr(QF + 4*qb), vr(BA0 if qb == 0 else BA)))
        a("v_mfma_f32_16x16x32_bf16 %s, %s, %s, %s" % (vr(20 + 8*qb), vr(KF + 4*qb + 4), vr(QF + 4*qb), vr(BB)))
    vwork = []
    for b in range(3):
        for j in range(2):
            for r in range(4): vwork.append("v_mul_f32 v%d, v%d, v%d" % (accV(b, j)+r, accV(b, j)+r, RV + 4*b + r))
            for p in range(2): vwork.append("v_cvt_pk_bf16_f32 v%d, v%d, v%d" % (VP + 6*j + 2*b + p, accV(b, j) + 2*p, accV(b, j) + 2*p + 1))
    vwork += ["v_lshrrev_b32 v188, 1, v3", "v_lshlrev_b32 v188, 10, v188", "v_and_b32 v189, 1, v3", "v_lshl_add_u32 v188, v189, 9, v188", "v_lshl_add_u32 v188, v2, 4, v188"]
    def fillv(n):
        for _ in range(min(n, len(vwork))): a(vwork.pop(0))
    fillv(8)
    PFR = 32
    for qb in range(2):
        Sx = 16 + 8*qb; m = 40 + 4*qb; t = m + 1
        a("v_max3_f32 v%d, v%d, v%d, v%d" % (m, Sx, Sx+1, Sx+2)); a("v_max3_f32 v%d, v%d, v%d, v%d" % (t, Sx+3, Sx+4, Sx+5))
        a("v_max3_f32 v%d, v%d, v%d, v%d" % (m, m, Sx+6, Sx+7)); a("v_max_f32 v%d, v%d, v%d" % (m, m, t))
    def xred(op):
        for w in (16, 32):
            for qb in range(2): a("v_mov_b32 v%d, v%d" % (41 + 4*qb, 40 + 4*qb))
            fillv(2)
            for qb in range(2): a("v_permlane%d_swap_b32 v%d, v%d" % (w, 40 + 4*qb, 41 + 4*qb))
            for qb in range(2): a("%s v%d, v%d, v%d" % (op, 40 + 4*qb, 40 + 4*qb, 41 + 4*qb))
    xred("v_max_f32")
    for qb in range(2): a("v_mul_f32 v%d, v%d, v%d" % (40 + 4*qb, 40 + 4*qb, 186 + qb))
    for qb in range(2):
        for r in range(8): a("v_fma_f32 v%d, v%d, v%d, -v%d" % (16 + 8*qb + r, 16 + 8*qb + r, 186 + qb, 40 + 4*qb))
    for qb in range(2):
        for r in range(8): a("v_exp_f32 v%d, v%d" % (16 + 8*qb + r, 16 + 8*qb + r))
    fillv(1)
    for qb in range(2):
        Sx = 16 + 8*qb; m = 40 + 4*qb
        a("v_add_f32 v%d, v%d, v%d" % (m, Sx, Sx+1)); a("v_add_f32 v%d, v%d, v%d" % (m+1, Sx+2, Sx+3))
        a("v_add_f32 v%d, v%d, v%d" % (m+2, Sx+4, Sx+5)); a("v_add_f32 v%d, v%d, v%d" % (m+3, Sx+6, Sx+7))
        a("v_add_f32 v%d, v%d, v%d" % (m, m, m+1)); a("v_add_f32 v%d, v%d, v%d" % (m+2, m+2, m+3)); a("v_add_f32 v%d, v%d, v%d" % (m, m, m+2))
    xred("v_add_f32")
    for qb in range(2): a("v_rcp_f32 v%d, v%d" % (40 + 4*qb, 40 + 4*qb))
    fillv(100)
    OA = 48
    for qb in range(2):
        Sx = 16 + 8*qb
        for r in range(8): a("v_mul_f32 v%d, v%d, v%d" % (Sx + r, Sx + r, 40 + 4*qb))
        for p in range(4): a("v_cvt_pk_bf16_f32 v%d, v%d, v%d" % (PFR + 4*qb + p, Sx + 2*p, Sx + 2*p + 1))
        for j in range(2):
            a("v_mfma_f32_16x16x32_bf16 %s, %s, %s, 0" % (vr(OA + 8*qb + 4*j), vr(VP + 6*j + 2*qb), vr(PFR + 4*qb)))
    for qb in range(2):
        for p in range(4): a("v_cvt_pk_bf16_f32 v%d, v%d, v%d" % (64 + 4*qb + p, OA + 8*qb + 2*p, OA + 8*qb + 2*p + 1))
        for l in wstore(layer, "buffer_store_dwordx4", vr(64 + 4*qb), "v188", "s28", 256*qb): a(l)

G_ACC, G_BF, RES = 16, 80, 8
def w2reg(i): return ar(112 + 4*i) if i < 36 else vr(176 + 4*(i - 36))
def woreg(i): return ar(112 + 4*i)
def x16_vaddr(a, v, t):
    a("v_bfe_u32 v%d, v0, 4, 1" % v); a("v_mul_u32_u24 v%d, 14336, v%d" % (v, v)); a("v_lshrrev_b32 v%d, 5, v0" % t); a("v_lshl_add_u32 v%d, v%d, 8, v%d" % (v, t, v))
    a("v_and_b32 v%d, 15, v0" % t); a("v_lshl_add_u32 v%d, v%d, 4, v%d" % (v, t, v))

def pg_pre(a, which, layer):
    NS = 8 if which == 2 else 28
    SRC, PITCH = (L.O, 32) if which == 2 else (L.H, 112)
    final = (which == 4 and layer == 1)
    a("s_mul_i32 s16, s%d, %d" % (S_W, NS))
    a("s_mul_i32 s21, s42, %d" % PITCH); a("s_add_u32 s21, s21, s16"); a("s_lshl_b32 s21, s21, 10"); a("s_add_u32 s21, s21, %d" % SRC)
    a("s_xor_b32 s20, s42, 1"); a("s_mul_i32 s20, s20, %d" % PITCH); a("s_add_u32 s20, s20, s16"); a("s_lshl_b32 s20, s20, 10"); a("s_add_u32 s20, s20, %d" % SRC)
    for j in (1, 2, 3):
        a("s_xor_b32 s16, s%d, %d" % (S_W, j)); a("s_mul_i32 s16, s16, 12288"); a("s_add_u32 s16, s16, %d" % (LDS_RING + (j-1)*4096)); a("v_add_u32 v%d, s16, v1" % (1 + j))
    a("s_mul_i32 s16, s%d, 12288" % S_W); a("s_add_u32 s16, s16, %d" % LDS_RING); a("v_add_u32 v5, s16, v1")
    if final:
        a("s_and_b32 s16, s42, 31"); a("s_lshl_b32 s16, s16, 6"); a("s_lshr_b32 s17, s42, 5"); a("s_add_u32 s16, s16, s17"); a("s_mul_i32 s18, s16, 896")
        a("s_lshl_b32 s16, s43, 6"); a("s_add_u32 s18, s18, s16")
        a("v_and_b32 v6, 31, v0"); a("v_mul_u32_u24 v6, 1792, v6"); a("v_lshrrev_b32 v7, 5, v0"); a("v_lshl_add_u32 v6, v7, 4, v6")
    else:
        if which == 2:
            a("s_mul_i32 s18, s42, 28"); a("s_lshl_b32 s16, s43, 1"); a("s_add_u32 s18, s18, s16"); a("s_lshl_b32 s18, s18, 10"); a("s_add_u32 s18, s18, %d" % L.X1)
        else:
            a("s_mul_i32 s18, s42, 28"); a("s_add_u32 s18, s18, s43"); a("s_lshl_b32 s18, s18, 10"); a("s_add_u32 s18, s18, %d" % L.X2)
            x16_vaddr(a, 6, 7)
        a("s_lshl_b32 s19, s42, 12"); a("s_lshl_b32 s16, s43, 8"); a("s_add_u32 s19, s19, s16"); a("s_add_u32 s19, s19, %d" % (L.ST1 if which == 2 else L.ST2))
        a("v_lshlrev_b32 v7, 2, v0")

def pgemm(a, which, layer, pf, pf_n=0):
    NS = 8 if which == 2 else 28
    wreg = woreg if which == 2 else w2reg
    final = (which == 4 and layer == 1)
    ld = " sc1"
    a("; ======== P%d layer %d" % (which, layer))
    N = 2*NS; D = 24; AHEAD = min(12, N)
    bf = lambda n: vr(G_BF + 4*(n % D))
    def bload(n):
        tbp = 1 if n < NS else 0; s = n % NS; sr = 20 if tbp else 21; e = []
        if s % 4 == 0 and s: e.append("s_add_u32 s%d, s%d, 4096" % (sr, sr))
        e.append("buffer_load_dwordx4 %s, v1, s[4:7], s%d offen offset:%d%s" % (bf(n), sr, (s % 4)*1024, ld))
        return e
    for n in range(AHEAD):
        for l in bload(n): a(l)
    stamp(a, "p%d issued" % which)
    S = Sched(24)
    acc = lambda j: G_ACC + 16*j
    for n in range(N):
        tbp = 1 if n < NS else 0; s = n % NS
        for fb in (1, 0):
            d = vr(acc(2*tbp + fb), 16)
            S.mfma("v_mfma_f32_32x32x16_bf16 %s, %s, %s, %s" % (d, wreg(2*s + fb), bf(n), "0" if s == 0 else d))
    nxt = AHEAD
    for n in range(N):
        if nxt < N and nxt - n <= D - 1:
            S.put(2*n + 1, bload(nxt)); nxt += 1
        elif pf_n > 0 and pf.q:
            S.put(2*n + 1, pf.take(1)); pf_n -= 1
    h = 2*NS
    wr = ["ds_write_b128 v%d, %s offset:%d" % (1 + j, vr(acc(j) + 4*i), 1024*i) for j in (3, 2) for i in range(4)]
    g = h + 3
    for k in range(0, 8, 2): S.put(g, wr[k:k+2]); g += 1
    unp = []
    U = G_BF + 4*((N) % D) if False else None
    S.put(g + 1, ["s_waitcnt lgkmcnt(0)", "s_barrier"])
    rd = ["ds_read_b128 %s, v5 offset:%d" % (vr(acc(j) + 4*i), (j-1)*4096 + 1024*i) for j in (2, 3) for i in range(4)]
    S.put(g + 2, rd[:4]); S.put(g + 3, rd[4:])
    pres = []
    for r in range(16): pres.append("v_add_f32 v%d, v%d, v%d" % (acc(2) + r, acc(2) + r, acc(3) + r))
    for p in range(8):
        pres += ["v_lshlrev_b32 v%d, 16, v%d" % (acc(3) + 2*p, RES + p), "v_and_b32 v%d, 0xffff0000, v%d" % (acc(3) + 2*p + 1, RES + p)]
    for r in range(16): pres.append("v_add_f32 v%d, v%d, v%d" % (acc(2) + r, acc(2) + r, acc(3) + r))
    left = S.flow(pres, min(g + 5, len(S.m) - 1))
    S.emit(a)
    stamp(a, "p%d kloop done" % which)
    k = min(len(left), 8)
    for l in left[:k]: a(l)
    for i in range(4): a("ds_write_b128 v2, %s offset:%d" % (vr(acc(1) + 4*i), 1024*i))
    for l in left[k:]: a(l)
    for r in range(16): a("v_add_f32 v%d, v%d, v%d" % (16 + r, 16 + r, acc(2) + r))
    a("s_waitcnt lgkmcnt(0)"); a("s_barrier")
    for i in range(4): a("ds_read_b128 %s, v5 offset:%d" % (vr(acc(1) + 4*i), 1024*i))
    for p in range(2):
        for r in range(8*p, 8*p + 8): a("v_add_f32 v%d, v%d, v%d" % (16 + r, 16 + r, acc(1) + r))
        for q in range(4*p, 4*p + 4): a("v_cvt_pk_bf16_f32 v%d, v%d, v%d" % (RES + q, 16 + 2*q, 17 + 2*q))
        if final:
            a("v_permlane32_swap_b32 v%d, v%d" % (RES + 4*p, RES + 4*p + 2)); a("v_permlane32_swap_b32 v%d, v%d" % (RES + 4*p + 1, RES + 4*p + 3))
            a("buffer_store_dwordx4 %s, v6, s[8:11], s18 offen offset:%d" % (vr(RES + 4*p), 32*p))
        elif which == 2:
            for l in wstore(layer, "buffer_store_dwordx4", vr(RES + 4*p), "v1", "s18", 1024*p): a(l)
        else:
            for l in wstore(layer, "buffer_store_dwordx4", vr(RES + 4*p), "v6", "s18", 512*p, True): a(l)
    if final: return
    a("v_add_f32 v48, v16, v17"); a("v_mul_f32 v49, v16, v16"); a("v_add_f32 v50, v18, v19"); a("v_mul_f32 v51, v17, v17")
    a("v_fmac_f32 v49, v18, v18"); a("v_fmac_f32 v51, v19, v19")
    for r in range(4, 16, 2):
        a("v_add_f32 v48, v48, v%d" % (16 + r)); a("v_fmac_f32 v49, v%d, v%d" % (16 + r, 16 + r))
        a("v_add_f32 v50, v50, v%d" % (17 + r)); a("v_fmac_f32 v51, v%d, v%d" % (17 + r, 17 + r))
    a("v_add_f32 v48, v48, v50"); a("v_add_f32 v49, v49, v51")
    a("v_permlane32_swap_b32 v48, v49"); a("v_add_f32 v48, v48, v49")
    for l in wstore(layer, "buffer_store_dword", "v48", "v7", "s19", 0, which == 4): a(l)

P3_ACC, P3_XF, P3_C, P3_T, P3_RAW = 16, 48, 80, 96, 128
KORD = [7*w + i for i in range(7) for w in range(4)]
def p3_pre(a):
    a("s_lshl_b32 s16, s%d, 2" % S_M); a("s_add_u32 s16, s16, s%d" % S_W); a("s_lshl_b32 s17, s16, 8"); a("s_add_u32 s17, s17, %d" % L.C13)
    a("v_lshrrev_b32 v2, 5, v0"); a("v_lshlrev_b32 v2, 4, v2")
    for kh in range(2):
        for i in range(4): a("buffer_load_dwordx4 %s, v2, s[4:7], s17 offen offset:%d" % (vr(P3_T + 16*kh + 4*i), kh*128 + i*32))
    a("s_lshl_b32 s20, s%d, 3" % S_SG)
    a("s_mul_i32 s26, s20, 112"); a("s_add_u32 s26, s26, s16"); a("s_lshl_b32 s26, s26, 10"); a("s_add_u32 s26, s26, %d" % L.H)
    a("s_lshl_b32 s16, s%d, 1" % S_W); a("s_add_u32 s16, s16, s20"); a("s_lshl_b32 s24, s16, 12"); a("s_add_u32 s24, s24, %d" % L.ST1); a("s_add_u32 s25, s24, 4096")
    a("s_mul_i32 s22, s20, %d" % (28*1024)); a("s_mul_i32 s16, s%d, 7168" % S_W); a("s_add_u32 s22, s22, s16"); a("s_add_u32 s22, s22, %d" % L.X1)
    a("s_mul_i32 s23, s%d, %d" % (S_W, SUBRING*1024)); a("s_add_u32 s23, s23, %d" % LDS_RING)
    a("v_add_u32 v4, %d, v1" % LDS_RING); a("v_add_u32 v5, %d, v1" % (LDS_RING + 65536))
    a("v_and_b32 v6, 31, v0"); a("v_lshlrev_b32 v6, 4, v6"); a("v_add_u32 v6, %d, v6" % LDS_ST)
    a("v_and_b32 v7, 7, v0"); a("v_lshrrev_b32 v3, 4, v0"); a("v_lshl_add_u32 v7, v7, 2, v3"); a("s_lshl_b32 s16, s%d, 10" % S_W); a("s_add_u32 s16, s16, %d" % LDS_ST)
    a("v_lshl_add_u32 v7, v7, 4, s16")
    a("v_cmp_gt_u32 vcc, 32, v0"); a("v_bfrev_b32 v3, 1"); a("v_cndmask_b32 v3, v3, v1, vcc")
    for r in range(16): a("v_add_f32 v%d, v%d, v%d" % (P3_C + r, P3_T + r, P3_T + 16 + r))

def p3(a, layer, pf, pf_total):
    ld = " sc1"
    a("; ======== P3 layer %d" % layer)
    def dma(blk):
        items = []; g0 = None
        for i in range(7):
            slot = (7*blk + i) % SUBRING; it = []
            if g0 is None or slot == 0 or i - g0 == 4:
                g0 = i
                it += ["s_add_u32 m0, s23, %d" % (slot*1024), "s_add_u32 s31, s22, %d" % ((blk*28 + i)*1024)]
            it.append("buffer_load_dwordx4 v1, s[4:7], s31 offen offset:%d%s lds ; @tag x1b%d" % ((i - g0)*1024, ld, blk))
            items.append(it)
        return items
    for it in dma(0):
        for l in it: a(l)
    for l in stats_loads(P3_RAW, 24, "v3") + stats_loads(P3_RAW + 16, 25, "v3"): a(l)
    for it in dma(1):
        for l in it: a(l)
    def xread(n):
        blk, s = divmod(n, 28); k = KORD[s]; w, i = divmod(k, 7)
        off = (w*SUBRING + (7*blk + i) % SUBRING)*1024
        return "ds_read_b128 %s, %s offset:%d" % (vr(P3_XF + 4*(n % 8)), "v4" if off < 65536 else "v5", off % 65536)
    def epilogue(blk):
        A = P3_ACC + 16*(blk & 1); T = P3_T; e = []
        M = T + 24 + 4*(blk & 1)
        if M + 3 > T + 31: raise Exception
        for r in range(16): e.append("v_fma_f32 v%d, -v%d, v%d, v%d" % (A + r, M, P3_C + r, A + r))
        for r in range(8): e.append("v_mul_f32 v%d, v%d, v%d" % (T + r, A + r, M + 1))
        for r in range(8):
            e.append("v_exp_f32 v%d, v%d" % (T + r, T + r)); e.append("v_mul_f32 v%d, v%d, v%d" % (A + r, A + r, A + 8 + r))
        for r in range(8): e.append("v_fma_f32 v%d, v%d, v%d, v%d" % (T + r, T + r, M + 2, M + 2))
        for r in range(8):
            e.append("v_rcp_f32 v%d, v%d" % (T + r, T + r))
            if r >= 2: e.append("v_mul_f32 v%d, v%d, v%d" % (A + r - 2, A + r - 2, T + r - 2))
        for r in (6, 7): e.append("v_mul_f32 v%d, v%d, v%d" % (A + r, A + r, T + r))
        for p in range(4): e.append("v_cvt_pk_bf16_f32 v%d, v%d, v%d" % (T + 16 + p, A + 2*p, A + 2*p + 1))
        e += wstore(layer, "buffer_store_dwordx4", vr(T + 16), "v1", "s26")
        e.append("s_add_u32 s26, s26, %d" % (112*1024))
        return e
    def stread(blk): return "ds_read_b96 %s, v6 offset:%d" % (vr(P3_T + 24 + 4*(blk & 1), 3), 512*blk)
    a(";@waitvm x1b0"); a("s_barrier")
    stamp(a, "p3 blk0")
    DEP = 6; GB = 21
    for n in range(DEP): a(xread(n))
    S = Sched(24)
    NT = 8*28
    for n in range(NT):
        blk, s = divmod(n, 28); acc = vr(P3_ACC + 16*(blk & 1), 16)
        pre = []
        if n % 2 == 0: pre = [";@waitlg x%d" % min(n + 1, NT - 1)]
        S.mfma("v_mfma_f32_32x32x16_bf16 %s, %s, %s, %s" % (acc, ar(4*KORD[s]), vr(P3_XF + 4*(n % 8)), "0" if s == 0 else acc), pre=["s_waitcnt lgkmcnt(%d) ; @auto" % 0] if False else pre)
    wcost = 4
    for n in range(NT):
        if n + DEP < NT: S.put(n, [xread(n + DEP) + " ; @tag x%d" % (n + DEP)])
        if n % 2 == 1: S.put(n, ["; wait-slot"])
    S.budget = 24
    _used = S.used
    S.used = lambda i: _used(i) + (4 if i % 2 == 1 else 0)
    for blk in range(8):
        b0 = 28*blk
        if blk + 1 < 8: S.g[b0 + GB] = [";@waitvm x1b%d" % (blk + 1), "s_barrier"] + S.g[b0 + GB]
        if blk + 2 < 8:
            for k, it in enumerate(dma(blk + 2)): S.put(b0 + GB + 1 + 2*k, it)
    R0, R1 = P3_RAW, P3_RAW + 16
    ch = []
    for x, y in zip(stats_reduce(R0), stats_reduce(R1)): ch += [x, y]
    for R in (R0, R1): ch += ["v_rsq_f32 v%d, v%d" % (R + 3, R + 1), "v_mov_b32 v%d, v%d" % (R + 2, R + 1)]
    for R in (R0, R1): ch += ["v_mul_f32 v%d, %s, v%d" % (R + 1, fhex(-LOG2E), R + 3)]
    left = S.flow(ch, 1, GB - 3); assert not left, left
    S.put(S.last + 1, ["s_mov_b32 exec_lo, 0x00ff00ff", "s_mov_b32 exec_hi, 0x00ff00ff", "ds_write_b96 v7, %s" % vr(R0, 3), "ds_write_b96 v7, %s offset:512 ; @tag stw" % vr(R1, 3), "s_mov_b64 exec, -1", "s_nop 3"])
    S.g[GB] = [";@waitlg stw"] + S.g[GB]
    for blk in range(8):
        S.put(28*blk + GB + 2, [stread(blk)])
        if blk + 1 < 8:
            left = S.flow(epilogue(blk), 28*(blk + 1) + 2, 28*(blk + 2)); assert not left, (blk, left)
    cand = [n for n in range(NT) if (n % 28) in (8, 10, 12, 14, 16, 18, 20)]
    step = max(1, len(cand) // max(pf_total, 1))
    for n in cand[::step][:pf_total]:
        S.put(n, pf.take(1))
    S.emit(a)
    stamp(a, "p3 kloop done")
    for x in epilogue(7): a(x)

SPIN_MAX = 1 << 17
def poll(a, setup, target, mask):
    l = a.label("poll")
    for x in setup: a(x)
    a("v_lshlrev_b32 v78, 2, v0"); a("s_mov_b32 s15, 0")
    a("%s:" % l)
    a("buffer_load_dword v77, v78, s[4:7], s3 offen sc1")
    a("s_waitcnt vmcnt(0)")
    a("v_cmp_gt_u32 vcc, %s, v77" % target)
    a("s_add_u32 s15, s15, 1")
    a("s_and_b32 vcc_lo, vcc_lo, %s" % mask)
    a("s_cbranch_scc0 %s_ok" % l)
    a("s_cmp_lt_u32 s15, %d" % SPIN_MAX); a("s_cbranch_scc1 %s" % l)
    a("%s_ok:" % l)

def signal(a, val, halo=False):
    l = a.label("sig")
    a("s_lshl_b32 s3, s%d, 8" % S_SG); a("s_lshl_b32 s16, s%d, 2" % S_M); a("s_add_u32 s3, s3, s16"); a("s_add_u32 s3, s3, %d" % L.FLG)
    a("v_mov_b32 v77, %d" % val); a("v_mov_b32 v78, 0")
    a("s_waitcnt vmcnt(0)"); a("s_barrier")
    a("s_cmp_lg_u32 s%d, 0" % S_W); a("s_cbranch_scc1 %s" % l)
    a("s_mov_b64 exec, 1")
    a("buffer_store_dword v77, v78, s[32:35], s3 offen ; @alt"); a("buffer_store_dword v77, v78, s[36:39], s3 offen sc1 ; @alt")
    if halo:
        a("s_cmp_lt_u32 s%d, 21" % S_M); a("s_cbranch_scc1 %s_h" % l)
        a("s_add_u32 s3, s3, %d" % (8192 - 84)); a("buffer_store_dword v77, v78, s[4:7], s3 offen sc1 ; @alt")
        a("%s_h:" % l)
    a("s_mov_b64 exec, -1")
    a("%s:" % l)

def wait(a, val, mask, halo=False):
    l = a.label("wt")
    a("s_cmp_lg_u32 s%d, 0" % S_W); a("s_cbranch_scc1 %s" % l)
    poll(a, ["s_lshl_b32 s3, s%d, 8" % S_SG, "s_add_u32 s3, s3, %d" % L.FLG], str(val), mask)
    if halo:
        a("s_and_b32 s16, s20, 15"); a("s_cmp_lg_u32 s16, 0"); a("s_cbranch_scc1 %s" % l)
        a("s_cmp_eq_u32 s21, 0"); a("s_cbranch_scc1 %s" % l)
        poll(a, ["s_add_u32 s3, s3, %d" % (8192 - 256)], "1", "0x7f")
    a("%s:" % l)
    a("s_waitcnt vmcnt(0)")
    a("s_barrier")

def touch(a, base_lines, nbytes, nparts=16):
    per = nbytes // nparts
    assert per % 8192 == 0 or per in (2048, 4096), per
    for x in base_lines: a(x)
    a("s_mul_i32 s16, s45, %d" % per); a("s_add_u32 s16, s16, s17")
    a("v_lshlrev_b32 v2, 7, v0")
    for i in range(max(1, per // 8192)):
        a("buffer_load_dword v%d, v2, s[4:7], s16 offen" % (16 + i)); a("s_add_u32 s16, s16, 8192")
    a("s_waitcnt vmcnt(0)")

def w13_setup(): return ["s_lshl_b32 s30, s49, 2", "s_add_u32 s30, s30, s%d" % S_W, "s_mul_i32 s30, s30, %d" % (28*1024), "s_add_u32 s30, s30, %d" % L.W13]
def wo_setup(): return ["s_lshl_b32 s30, s40, 16", "s_lshl_b32 s29, s%d, 14" % S_W, "s_add_u32 s30, s30, s29", "s_add_u32 s30, s30, %d" % L.WO]
def w2_setup(): return ["s_mul_i32 s30, s40, %d" % (224*1024), "s_mul_i32 s29, s%d, %d" % (S_W, 56*1024), "s_add_u32 s30, s30, s29", "s_add_u32 s30, s30, %d" % L.W2]

def persistent(n="main_kernel"):
    a = Asm(); a(kernel_begin(n)); stamp(a, "start")
    a("s_cmp_ge_u32 s2, 256"); a("s_cbranch_scc1 %s_end" % n)
    a("s_load_dwordx2 s[16:17], s[0:1], 72"); a("s_load_dwordx2 s[18:19], s[0:1], 56")
    a("v_lshrrev_b32 v2, 6, v0"); a("v_and_b32 v0, 63, v0"); a("v_readfirstlane_b32 s%d, v2" % S_W); a("v_lshlrev_b32 v1, 4, v0")
    a("s_and_b32 s%d, s2, 7" % S_SG); a("s_lshr_b32 s%d, s2, 3" % S_M)
    a("s_getreg_b32 s44, hwreg(HW_REG_XCC_ID)"); a("s_and_b32 s44, s44, 0xff"); a("s_or_b32 s44, s44, 0x100")
    a("s_min_u32 s49, s%d, 27" % S_M)
    a("s_mul_i32 s41, s49, 9363"); a("s_lshr_b32 s41, s41, 16"); a("s_mul_i32 s20, s41, 7"); a("s_sub_u32 s40, s49, s20")
    a("s_lshl_b32 s42, s%d, 3" % S_SG); a("s_lshl_b32 s20, s41, 1"); a("s_add_u32 s42, s42, s20"); a("s_lshr_b32 s20, s%d, 1" % S_W); a("s_add_u32 s42, s42, s20")
    a("s_lshl_b32 s43, s40, 1"); a("s_and_b32 s20, s%d, 1" % S_W); a("s_add_u32 s43, s43, s20")
    a("s_mov_b32 s20, 0xffff"); a("s_cmp_lt_u32 s41, 2"); a("s_cselect_b32 s47, s20, 0xffff0000")
    a("s_mov_b32 s20, 0x3fff"); a("s_cmp_lt_u32 s%d, 16" % S_M); a("s_cselect_b32 s48, s20, 0x0fffff80")
    a("s_sub_u32 s45, s%d, 28" % S_M); a("s_lshl_b32 s45, s45, 2"); a("s_add_u32 s45, s45, s%d" % S_W)
    a("s_waitcnt lgkmcnt(0)")
    srd(a, 4, 16, 17, L.END); srd(a, 8, 18, 19, 2048*896)
    l = a.label("reg")
    a("s_cmp_lg_u32 s%d, 0" % S_W); a("s_cbranch_scc1 %s" % l)
    a("s_lshl_b32 s3, s%d, 8" % S_SG); a("s_lshl_b32 s16, s%d, 2" % S_M); a("s_add_u32 s3, s3, s16"); a("s_add_u32 s3, s3, %d" % (L.FLG + 4096))
    a("v_mov_b32 v3, s44"); a("v_mov_b32 v2, 0"); a("s_mov_b64 exec, 1")
    a("buffer_store_dword v3, v2, s[4:7], s3 offen sc1 ; @alt"); a("s_mov_b64 exec, -1")
    a("%s:" % l)
    p1_load_w(a)
    a("s_mul_i32 s18, s42, 28"); a("s_add_u32 s18, s18, s43"); a("s_lshl_b32 s18, s18, 10"); a("s_add_u32 s18, s18, %d" % L.X0)
    x16_vaddr(a, 6, 7)
    for p in range(2): a("buffer_load_dwordx4 %s, v6, s[4:7], s18 offen offset:%d" % (vr(RES + 4*p), 512*p))
    pf = PF()
    def mode_setup():
        poll(a, ["s_lshl_b32 s3, s%d, 8" % S_SG, "s_add_u32 s3, s3, %d" % (L.FLG + 4096)], "1", "-1")
        a("v_cmp_ne_u32 vcc, s44, v77")
        a("s_cmp_eq_u32 vcc_lo, 0"); a("s_cselect_b32 s34, %d, 0" % L.END); a("s_cselect_b32 s38, 0, %d" % L.END)
        for d in (32, 36):
            a("s_mov_b32 s%d, s4" % d); a("s_mov_b32 s%d, s5" % (d+1)); a("s_mov_b32 s%d, 0x20000" % (d+3))
        a("s_barrier")
    for layer in range(2):
        P = 4*layer
        p1_pre(a, layer)
        if layer == 0:
            pf.add([woreg(i) for i in range(16)], wo_setup())
            n1 = OPT.get("w13_in_p1", 12)
            pf.add([ar(4*i) for i in range(n1)], w13_setup())
            p1(a, 0, pf, after_first=mode_setup, pf_sched=OPT.get("p1l0_pf", [0,0,0,0,1,2,2,2,2,2,3,4,4,4]))
        else:
            wait(a, P, "s48", halo=True); stamp(a, "p1 go")
            p1(a, 1, pf)
        pf.flush(a)
        stamp(a, "p1 done")
        signal(a, P + 1)
        hl = a.label("helper")
        a("s_cmp_ge_u32 s%d, 28" % S_M); a("s_cbranch_scc1 %s" % hl)
        pg_pre(a, 2, layer)
        wait(a, P + 1, "s47"); stamp(a, "p2 go")
        if layer == 0:
            pf.add([ar(4*i) for i in range(n1, 28)], w13_setup(), first=n1)
            pgemm(a, 2, layer, pf, pf_n=28 - n1)
            pf.flush(a)
            w2lo = 0
        else:
            n2 = OPT.get("w2_in_p2", 12)
            pf.add([w2reg(i) for i in range(56 - n2, 56)], w2_setup(), first=56 - n2)
            pgemm(a, 2, layer, pf, pf_n=n2)
            pf.flush(a)
        stamp(a, "p2 done")
        signal(a, P + 2)
        p3_pre(a)
        wait(a, P + 2, "0x0fffffff"); stamp(a, "p3 go")
        nw2 = 56 if layer == 0 else 56 - n2
        pf.add([w2reg(i) for i in range(nw2)], w2_setup())
        p3(a, layer, pf, nw2)
        pf.flush(a)
        stamp(a, "p3 done")
        signal(a, P + 3)
        pg_pre(a, 4, layer)
        wait(a, P + 3, "0x0fffffff"); stamp(a, "p4 go")
        if layer == 0:
            pgemm(a, 4, layer, pf)
            pf.add([woreg(i) for i in range(16)], wo_setup())
            stamp(a, "p4 done")
            signal(a, P + 4, halo=True)
            pf.flush(a)
            jl = a.label("join")
            a("s_waitcnt vmcnt(0)")
            a("s_branch %s" % jl)
        else:
            pgemm(a, 4, layer, pf)
            stamp(a, "p4 done")
            stamp_flush(a)
            a("s_branch %s_end" % n)
        a("%s:" % hl)
        touch(a, ["s_mov_b32 s17, %d" % L.W2], 7*224*1024 // 131072 * 131072)
        if layer == 0: a("%s:" % jl)
    a(n + "_end:"); a("s_endpgm")
    return n, a.text()

if __name__ == "__main__":
    import sys, gen_prep, json
    STAMPS = len(sys.argv) > 2 and sys.argv[2] == "ts"
    for kv in sys.argv[3:]:
        k, v = kv.split("="); OPT[k] = json.loads(v)
    pt, pd = gen_prep.emit_prep()
    n, t = persistent()
    launches = [("prep_kernel", gen_prep.PREP_WGS, 256, 0), (n, 256, 256, LDS_TOTAL)]
    txt = file_header(launches) + pt + lint.finish(t) + "\n" + '.section .rodata,"a"\n.p2align 6\n' + pd + ".p2align 6\n" + descriptor(n, 512, 102, 256)
    open(sys.argv[1], "w").write(txt)
    json.dump(STNAMES, open("stnames.json", "w"))
```
